```python
import torch

def _softmax(x, axis=-1):
    return torch.softmax(x, dim=axis)
def _gelu(x):
    return torch.nn.functional.gelu(x, approximate="tanh")
def _silu(x):
    return torch.nn.functional.silu(x)
def _sigmoid(x):
    return torch.sigmoid(x)
def _layernorm(x, axis=-1, eps=1e-5):
    m = x.mean(dim=axis, keepdim=True)
    v = x.var(dim=axis, keepdim=True, unbiased=False)
    return (x - m) / torch.sqrt(v + eps)
def _scatter_add(tgt, idx, src, axis=0):
    return tgt.clone().index_add_(axis, idx, src)
def _segment_sum(src, seg, n):
    out = torch.zeros((n,) + src.shape[1:], dtype=src.dtype)
    return out.index_add_(0, seg, src)
def _pad(x, pw):
    flat = tuple(v for pair in reversed(pw) for v in pair)
    return torch.nn.functional.pad(x, flat)

kernel_name = 'concat_heads__spectral_fnet__spectral_fnet__prompt'

def setup_inputs():

    _w = (lambda a: (lambda t: t.to(torch.bfloat16) if t.is_floating_point() else t)(torch.as_tensor(a)))
    def _A_setup():
        B, S, D = 1, 2048, 512
        ns = torch.arange(S)[:, None] * torch.arange(S)[None, :]
        nd = torch.arange(D)[:, None] * torch.arange(D)[None, :]
        Ws_re = torch.cos(-2.0 * torch.pi * ns / S).to(float)
        Ws_im = torch.sin(-2.0 * torch.pi * ns / S).to(float)
        Wd_re = torch.cos(-2.0 * torch.pi * nd / D).to(float)
        Wd_im = torch.sin(-2.0 * torch.pi * nd / D).to(float)
        return {
            "x": _w((lambda *s: torch.randn(*s, dtype=torch.bfloat16) * 0.05)(B, S, D)),
            "dft_seq_re": _w(Ws_re),
            "dft_seq_im": _w(Ws_im),
            "dft_hid_re": _w(Wd_re),
            "dft_hid_im": _w(Wd_im),
        }
    _A_in = _A_setup()

    def _B_setup():
        B, S, D = 1, 2048, 512
        ns = torch.arange(S)[:, None] * torch.arange(S)[None, :]
        nd = torch.arange(D)[:, None] * torch.arange(D)[None, :]
        Ws_re = torch.cos(-2.0 * torch.pi * ns / S).to(float)
        Ws_im = torch.sin(-2.0 * torch.pi * ns / S).to(float)
        Wd_re = torch.cos(-2.0 * torch.pi * nd / D).to(float)
        Wd_im = torch.sin(-2.0 * torch.pi * nd / D).to(float)
        return {
            "x": _w((lambda *s: torch.randn(*s, dtype=torch.bfloat16) * 0.05)(B, S, D)),
            "dft_seq_re": _w(Ws_re),
            "dft_seq_im": _w(Ws_im),
            "dft_hid_re": _w(Wd_re),
            "dft_hid_im": _w(Wd_im),
        }
    _B_in = _B_setup()

    return {
        "A_x": _A_in["x"],
        "A_dft_seq_re": _A_in["dft_seq_re"],
        "A_dft_seq_im": _A_in["dft_seq_im"],
        "A_dft_hid_re": _A_in["dft_hid_re"],
        "A_dft_hid_im": _A_in["dft_hid_im"],
        "B_x": _B_in["x"],
        "B_dft_seq_re": _B_in["dft_seq_re"],
        "B_dft_seq_im": _B_in["dft_seq_im"],
        "B_dft_hid_re": _B_in["dft_hid_re"],
        "B_dft_hid_im": _B_in["dft_hid_im"],
    }

def reference(A_x, A_dft_seq_re, A_dft_seq_im, A_dft_hid_re, A_dft_hid_im, B_x, B_dft_seq_re, B_dft_seq_im, B_dft_hid_re, B_dft_hid_im):
    def _A_ref(x, dft_seq_re, dft_seq_im, dft_hid_re, dft_hid_im):
        a = torch.einsum("bsd,ed->bse", x, dft_hid_re)
        b = torch.einsum("bsd,ed->bse", x, dft_hid_im)
        y = torch.einsum("ts,bse->bte", dft_seq_re, a) - torch.einsum("ts,bse->bte", dft_seq_im, b)
        return y

    def _B_ref(x, dft_seq_re, dft_seq_im, dft_hid_re, dft_hid_im):
        a = torch.einsum("bsd,ed->bse", x, dft_hid_re)
        b = torch.einsum("bsd,ed->bse", x, dft_hid_im)
        y = torch.einsum("ts,bse->bte", dft_seq_re, a) - torch.einsum("ts,bse->bte", dft_seq_im, b)
        return y

    a = _A_ref(A_x, A_dft_seq_re, A_dft_seq_im, A_dft_hid_re, A_dft_hid_im)
    b = _B_ref(B_x, B_dft_seq_re, B_dft_seq_im, B_dft_hid_re, B_dft_hid_im)
    return torch.concatenate([a, b], axis=-1)
```

```python
import struct, sys
NAME='concat_heads__spectral_fnet__spectral_fnet__prompt'
def f2h(x): return '0x%08x'%struct.unpack('<I',struct.pack('<f',x))[0]
class A:
    def __init__(s): s.l=[]
    def __call__(s,t):
        for x in t.strip('\n').split('\n'): s.l.append('  '+x.strip())
    def lab(s,n): s.l.append(n+':')
    def txt(s): return '\n'.join(s.l)+'\n'
def vr(a,n): return 'v[%d:%d]'%(a,a+n-1)
def mfma(d,a,b,c=None):
    return 'v_mfma_f32_16x16x32_bf16 %s, %s, %s, %s'%(vr(d,4),vr(a,4),vr(b,4),'0' if c is None else vr(c,4))

def srd(a,d,lo,hi,n):
    a(f's_mov_b32 s{d}, s{lo}\ns_and_b32 s{d+1}, s{hi}, 0xffff\ns_mov_b32 s{d+2}, {n}\ns_mov_b32 s{d+3}, 0x20000')

def desc(name,vg,sg=64):
    return f""".section .rodata,"a"
.p2align 6
.amdhsa_kernel {name}
  .amdhsa_next_free_vgpr {vg}
  .amdhsa_next_free_sgpr {sg}
  .amdhsa_accum_offset {(vg+3)//4*4}
  .amdhsa_group_segment_fixed_size 0
  .amdhsa_kernarg_size 104
  .amdhsa_user_sgpr_count 2
  .amdhsa_user_sgpr_kernarg_segment_ptr 1
  .amdhsa_system_sgpr_workgroup_id_x 1
.end_amdhsa_kernel
"""
def head(name):
    return f""".text
.globl {name}
.p2align 8
.type {name},@function
{name}:
"""
TPL=0x104000

def phase1(name):
    a=A()
    a("""s_lshr_b32 s20, s2, 4
    s_lshl_b32 s20, s20, 3
    s_and_b32 s21, s2, 7
    s_add_u32 s20, s20, s21
    s_cmp_ge_u32 s20, 130
    s_cbranch_scc1 L_p1_done
    s_load_dwordx2 s[4:5], s[0:1], 0
    s_load_dwordx2 s[6:7], s[0:1], 40
    s_load_dwordx2 s[16:17], s[0:1], 96
    v_lshrrev_b32 v1, 6, v0
    v_and_b32 v2, 63, v0
    s_bfe_u32 s22, s2, 0x10003
    v_readfirstlane_b32 s23, v1
    s_cmp_ge_u32 s20, 65
    s_cselect_b32 s24, 65, 0
    s_sub_u32 s25, s20, s24
    s_cselect_b32 s26, 1, 0""")
    a.l.pop()
    a("""s_cmp_eq_u32 s25, 64
    s_cselect_b32 s27, 0xffffffc0, s25
    s_cselect_b32 s28, %s, 0
    v_lshlrev_b32 v3, 4, v2
    s_lshl_b32 s29, s23, 9
    s_add_u32 s30, s29, s25
    s_lshl_b32 s30, s30, 10
    s_sub_u32 s31, s29, s27
    s_lshl_b32 s32, s23, 13
    s_cmp_lg_u32 s24, 0
    s_waitcnt lgkmcnt(0)
    s_cselect_b32 s4, s6, s4
    s_cselect_b32 s5, s7, s5"""%f2h(1/32))
    srd(a,8,4,5,'0x200000')
    for i in range(4):
        a(f"""s_add_u32 m0, s32, {2048*i}
        s_add_u32 s33, s30, {i*0x20000}
        s_add_u32 s34, s31, {128*i}
        buffer_load_dwordx4 v3, s[8:11], s33 offen lds
        s_and_b32 s34, s34, 2047
        s_add_u32 m0, s32, {2048*i+1024}
        s_lshl_b32 s34, s34, 10
        buffer_load_dwordx4 v3, s[8:11], s34 offen lds""")
    srd(a,12,16,17,'0x209000')
    C1,S1,NS1,TC,TS,ST2,F3=8,12,16,20,24,28,34
    a(f"""v_and_b32 v4, 15, v2
    v_lshrrev_b32 v5, 4, v2
    s_lshl_b32 s35, s22, 4
    v_add_u32 v6, s35, v4
    v_cvt_f32_u32 v6, v6
    v_lshlrev_b32 v7, 2, v5
    v_cvt_f32_u32 v7, v7
    v_cvt_f32_u32 v38, v4
    v_mul_f32 v39, {f2h(1/32)}, v6
    v_mul_f32 v6, {f2h(1/512)}, v6
    v_mul_f32 v40, v7, v39
    v_mul_f32 v41, v7, v6
    v_mul_f32 v42, {f2h(1/16)}, v38
    v_mul_f32 v43, v7, v42
    v_fma_f32 v44, v38, s28, v43""")
    t=48
    for q in range(2):
        for r in range(4):
            a(f'v_fmamk_f32 v{t+4*q+r}, v39, {f2h(16*q+r)}, v40')
    for k in range(8):
        a(f'v_cos_f32 v{t+8+k}, v{t+k}\nv_sin_f32 v{t+16+k}, v{t+k}')
    for r in range(4):
        a(f'v_fmamk_f32 v{t+24+r}, v6, {f2h(r)}, v41')
    for k in range(4):
        a(f'v_cvt_pk_bf16_f32 v{C1+k}, v{t+8+2*k}, v{t+9+2*k}\nv_cvt_pk_bf16_f32 v{S1+k}, v{t+16+2*k}, v{t+17+2*k}')
    for r in range(4):
        a(f'v_cos_f32 v{TC+r}, v{t+24+r}\nv_sin_f32 v{TS+r}, v{t+24+r}')
    for k in range(4):
        a(f'v_xor_b32 v{NS1+k}, 0x80008000, v{S1+k}')
    for r in range(4):
        a(f'v_fmamk_f32 v{t+r}, v42, {f2h(r)}, v43\nv_fmamk_f32 v{t+4+r}, v42, {f2h(r)}, v44')
    for r in range(4):
        a(f'v_cos_f32 v{t+8+r}, v{t+r}\nv_sin_f32 v{t+12+r}, v{t+r}')
    for r in range(4):
        a(f'v_add_f32 v{t+16+r}, {f2h(0.125)}, v{t+4+r}\nv_add_f32 v{t+20+r}, {f2h(-0.125)}, v{t+4+r}')
    a(f"""v_cvt_pk_bf16_f32 v{ST2+2}, v{t+8}, v{t+9}
    v_cvt_pk_bf16_f32 v{ST2+3}, v{t+10}, v{t+11}
    v_cvt_pk_bf16_f32 v{ST2+4}, v{t+12}, v{t+13}
    v_cvt_pk_bf16_f32 v{ST2+5}, v{t+14}, v{t+15}""")
    for r in range(4):
        a(f'v_cos_f32 v{t+24+r}, v{t+16+r}\nv_cos_f32 v{t+28+r}, v{t+20+r}')
    a(f'v_xor_b32 v{ST2}, 0x80008000, v{ST2+4}\nv_xor_b32 v{ST2+1}, 0x80008000, v{ST2+5}')
    for r in range(4):
        a(f'v_cvt_pk_bf16_f32 v{F3+r}, v{t+24+r}, v{t+28+r}')
    a(f"""v_lshlrev_b32 v38, 3, v2
    v_add_u32 v38, s32, v38
    v_bfe_u32 v40, v4, 1, 2
    v_xor_b32 v41, s23, v40
    v_xor_b32 v42, v5, v40
    v_lshlrev_b32 v43, 6, v4
    v_lshl_add_u32 v41, v41, 4, v43
    v_lshl_add_u32 v42, v42, 4, v43
    v_lshlrev_b32 v39, 12, v5
    v_add_u32 v39, v39, v41
    v_add_u32 v39, 0x8000, v39
    s_lshl_b32 s36, s23, 12
    s_add_u32 s36, s36, 0x8000
    v_add_u32 v6, s36, v42
    v_and_b32 v40, 1, v5
    v_lshrrev_b32 v41, 1, v5
    v_lshlrev_b32 v7, 10, v4
    v_lshl_add_u32 v7, v40, 6, v7
    v_lshl_add_u32 v7, v41, 4, v7
    s_lshl_b32 s37, s23, 8
    s_lshl_b32 s38, s22, 5
    s_add_u32 s37, s37, s38
    v_add_u32 v7, s37, v7
    s_lshl_b32 s39, s20, 14""")
    XA=40; D1=72; B2=104; D2=120; P=152; A3=168; D3=184; O=200
    def rd(i):
        for ab in range(2):
            for q in range(2):
                a(f'ds_read_b64_tr_b16 {vr(XA+8*i+4*ab+2*q,2)}, v38 offset:{(2*i+ab)*1024+512*q}')
    a('s_waitcnt vmcnt(4)'); rd(0); rd(1)
    a('s_waitcnt vmcnt(0)'); rd(2); rd(3)
    def st1(i):
        xa=XA+8*i; xb=xa+4; re=D1+8*i; im=re+4
        a(mfma(re,xa,C1)); a(mfma(im,xa,NS1)); a(mfma(re,xb,S1,re)); a(mfma(im,xb,C1,im))
    def tw(i):
        re=D1+8*i; im=re+4; o=[]
        tmp=XA+8*i
        for r in range(4):
            o.append(f'v_mul_f32 v{tmp+r}, v{re+r}, v{TC+r}')
            o.append(f'v_mul_f32 v{tmp+4+r}, v{im+r}, v{TC+r}')
        for r in range(4):
            o.append(f'v_fmac_f32 v{tmp+r}, v{im+r}, v{TS+r}')
            o.append(f'v_fma_f32 v{tmp+4+r}, -v{re+r}, v{TS+r}, v{tmp+4+r}')
        b=B2+4*i
        o+= [f'v_cvt_pk_bf16_f32 v{b}, v{tmp}, v{tmp+1}',f'v_cvt_pk_bf16_f32 v{b+1}, v{tmp+2}, v{tmp+3}',
             f'v_cvt_pk_bf16_f32 v{b+2}, v{tmp+4}, v{tmp+5}',f'v_cvt_pk_bf16_f32 v{b+3}, v{tmp+6}, v{tmp+7}']
        return o
    def st2(i):
        b=B2+4*i; re=D2+8*i; im=re+4
        return [mfma(re,ST2+2,b), mfma(im,ST2,b)]
    def pk(i):
        re=D2+8*i; im=re+4
        return [f'v_cvt_pk_bf16_f32 v{P+4*r+i}, v{re+r}, v{im+r}' for r in range(4)]
    a('s_waitcnt lgkmcnt(8)'); st1(0); st1(1)
    a('s_waitcnt lgkmcnt(0)'); st1(2); st1(3)
    for x in tw(0): a(x)
    for x in tw(1): a(x)
    for x in st2(0): a(x)
    for x in tw(2): a(x)
    for x in st2(1): a(x)
    for x in tw(3): a(x)
    for x in st2(2): a(x)
    for x in pk(0): a(x)
    for x in st2(3): a(x)
    for x in pk(1): a(x)
    a('s_nop 1')
    for x in pk(2): a(x)
    a('s_nop 1')
    for x in pk(3): a(x)
    for r in range(4):
        a(f'ds_write_b128 v39, {vr(P+4*r,4)} offset:{1024*r}')
    a('s_waitcnt lgkmcnt(0)\ns_barrier')
    for u in range(4):
        a(f'ds_read_b128 {vr(A3+4*u,4)}, v6 offset:{1024*u}')
    for u in range(4):
        a(f's_waitcnt lgkmcnt({3-u})'); a(mfma(D3+4*u,A3+4*u,F3))
    a('s_nop 4')
    for p in range(2):
        if p==1: a('s_nop 1')
        t0=D3+8*p; t1=t0+4; o=O+4*p
        a(f"""v_cvt_pk_bf16_f32 v{o}, v{t0}, v{t0+1}
        v_cvt_pk_bf16_f32 v{o+1}, v{t0+2}, v{t0+3}
        v_cvt_pk_bf16_f32 v{o+2}, v{t1}, v{t1+1}
        v_cvt_pk_bf16_f32 v{o+3}, v{t1+2}, v{t1+3}
        s_nop 1
        v_permlane16_swap_b32 v{o}, v{o+2}
        v_permlane16_swap_b32 v{o+1}, v{o+3}
        s_nop 1
        buffer_store_dwordx4 {vr(o,4)}, v7, s[12:15], s39 offen offset:{128*p}""")
    a.lab('L_p1_done')
    a('s_endpgm')
    return head(name)+a.txt()+desc(name,208)

def phase2(name):
    a=A()
    a("""s_cmp_ge_u32 s2, 256
    s_cbranch_scc1 L_p2_done
    s_load_dwordx2 s[4:5], s[0:1], 96
    s_load_dwordx2 s[6:7], s[0:1], 80
    v_lshrrev_b32 v1, 6, v0
    v_and_b32 v2, 63, v0
    s_and_b32 s20, s2, 7
    v_readfirstlane_b32 s23, v1
    s_bfe_u32 s21, s2, 0x10007
    s_bfe_u32 s22, s2, 0x10006
    s_bfe_u32 s24, s2, 0x30003
    s_sub_u32 s25, 16, s20
    s_cmp_eq_u32 s20, 0
    s_cselect_b32 s25, 8, s25
    s_cmp_lg_u32 s22, 0
    s_cselect_b32 s25, s25, s20
    s_sub_u32 s26, 16, s25
    s_and_b32 s26, s26, 15
    s_sub_u32 s27, 7, s24""")
    a("""s_mul_i32 s28, s21, 65
    s_lshl_b32 s29, s23, 4
    s_add_u32 s28, s28, s29
    s_lshl_b32 s28, s28, 14
    s_lshl_b32 s29, s25, 10
    s_lshl_b32 s30, s24, 7
    s_add_u32 s29, s29, s30
    s_add_u32 s29, s29, s28
    s_lshl_b32 s30, s26, 10
    s_add_u32 s30, s30, s28
    s_lshl_b32 s31, s27, 7
    s_add_u32 s31, s31, s30
    v_lshrrev_b32 v5, 4, v2
    v_lshrrev_b32 v3, 3, v2
    v_and_b32 v4, 7, v2
    v_lshlrev_b32 v6, 1, v5
    v_xor_b32 v6, v4, v6
    v_lshlrev_b32 v7, 14, v3
    v_lshl_add_u32 v8, v6, 4, v7
    v_lshlrev_b32 v9, 4, v4
    v_sub_u32 v9, 114, v9
    v_add_u32 v9, v7, v9
    s_cmp_eq_u32 s23, 0
    s_cselect_b32 s32, 0x100000, 0
    v_mov_b32 v10, s32
    v_cmp_gt_u32 vcc, 8, v2
    s_lshl_b32 s33, s23, 11
    s_nop 0
    v_cndmask_b32 v10, 0, v10, vcc
    v_add_u32 v11, v9, v10
    v_add_u32 v12, v7, v10
    s_waitcnt lgkmcnt(0)""")
    srd(a,8,4,5,'0x209000')
    MI=16
    a(f"""s_mov_b32 m0, s33
    s_add_u32 s34, s29, 0x20000
    s_add_u32 s35, s31, 0x20000
    buffer_load_dwordx4 v8, s[8:11], s29 offen lds
    s_add_u32 m0, s33, 1024
    buffer_load_dwordx4 {vr(MI,4)}, v11, s[8:11], s31 offen
    buffer_load_dwordx4 v8, s[8:11], s34 offen lds
    buffer_load_dwordx4 {vr(MI+4,4)}, v9, s[8:11], s35 offen
    s_cmp_lg_u32 s24, 0
    s_cbranch_scc1 L_p2_nz
    s_add_u32 s36, s30, 0x20000
    buffer_load_ushort v24, v12, s[8:11], s30 offen
    buffer_load_ushort v25, v7, s[8:11], s36 offen""")
    a.lab('L_p2_nz')
    srd(a,12,6,7,'0x400000')
    a("""v_lshlrev_b32 v13, 7, v3
    v_lshl_add_u32 v13, v6, 4, v13
    s_add_u32 s36, s33, 8192
    v_add_u32 v13, s36, v13
    v_and_b32 v15, 15, v2
    v_bfe_u32 v30, v2, 2, 2
    v_and_b32 v31, 3, v2
    v_lshl_add_u32 v32, v5, 2, v30
    v_bfe_u32 v33, v32, 1, 2
    v_lshlrev_b32 v32, 7, v32
    v_lshl_add_u32 v32, v31, 3, v32""")
    for ct in range(4):
        a(f'v_xor_b32 v{26+ct}, {ct}, v33\nv_lshl_add_u32 v{26+ct}, v{26+ct}, 5, v32')
    a("""v_lshlrev_b32 v14, 15, v15
    v_and_b32 v30, 1, v5
    v_lshl_add_u32 v14, v30, 5, v14
    v_lshrrev_b32 v30, 1, v5
    v_lshl_add_u32 v14, v30, 4, v14
    s_lshl_b32 s37, s23, 9
    s_add_u32 s37, s37, s25
    s_lshl_b32 s38, s37, 11
    s_lshl_b32 s39, s21, 10
    s_add_u32 s38, s38, s39
    s_lshl_b32 s39, s24, 7
    s_add_u32 s38, s38, s39""")
    BC=32+4 ; BC=36
    AR=68
    ACC=132
    O=164
    T0=172
    a(f"""v_lshlrev_b32 v30, 4, v15
    v_add_u32 v30, s37, v30
    v_cvt_f32_u32 v30, v30
    v_lshlrev_b32 v31, 2, v5
    v_cvt_f32_u32 v31, v31
    v_mul_f32 v30, {f2h(1/2048)}, v30
    v_add_f32 v32, {f2h(0.125)}, v30
    s_cmp_lg_u32 s25, 0
    s_cselect_b32 s40, 1, 0
    v_add_u32 v33, s40, v15
    v_and_b32 v33, 1, v33
    v_lshlrev_b32 v33, 31, v33
    v_xor_b32 v33, {f2h(0.7071067811865476)}, v33
    v_mov_b32 v34, {f2h(0.125)}
    v_cmp_eq_u32 s[42:43], 0, v5""")
    for kt in range(2):
        tf=30 if kt==0 else 32
        a(f'v_fma_f32 v{T0}, v31, v{tf}, -v34\nv_fma_f32 v{T0+1}, v31, v{tf}, v34')
        for kk in range(4):
            base=T0+(0 if kk<2 else 1)
            tt=T0+2+(kk&1)*16
            for q in range(2):
                for r in range(4):
                    K=32*(kk&1)+16*q+r
                    a(f'v_fmamk_f32 v{tt+4*q+r}, v{tf}, {f2h(K)}, v{base}')
            for k in range(8): a(f'v_cos_f32 v{tt+8+k}, v{tt+k}')
            if kk==2:
                a(f'v_cndmask_b32 v{tt+8}, v{tt+8}, v33, s[42:43]')
            else:
                a('s_nop 0')
            for k in range(4):
                a(f'v_cvt_pk_bf16_f32 v{BC+16*kt+4*kk+k}, v{tt+8+2*k}, v{tt+9+2*k}')
    a('s_waitcnt vmcnt(0)')
    a('s_cmp_lg_u32 s24, 0\ns_cbranch_scc1 L_p2_nofix')
    a(f"""v_cmp_eq_u32 vcc, 0, v4
    v_lshlrev_b32 v24, 16, v24
    v_lshlrev_b32 v25, 16, v25
    v_bfi_b32 v24, 0xffff, v{MI+3}, v24
    v_bfi_b32 v25, 0xffff, v{MI+7}, v25""".replace('0xffff','s44').replace('v_cmp_eq_u32 vcc, 0, v4','s_mov_b32 s44, 0xffff\nv_cmp_eq_u32 vcc, 0, v4'))
    a(f'v_cndmask_b32 v{MI+3}, v{MI+3}, v24, vcc\nv_cndmask_b32 v{MI+7}, v{MI+7}, v25, vcc')
    a.lab('L_p2_nofix')
    for i in range(2):
        for k in range(4):
            a(f'v_alignbit_b32 v{T0+4*i+k}, v{MI+4*i+3-k}, v{MI+4*i+3-k}, 16')
    a(f'ds_write_b128 v13, {vr(T0,4)}\nds_write_b128 v13, {vr(T0+4,4)} offset:1024')
    a('s_waitcnt lgkmcnt(0)\ns_barrier')
    reads=[(kk,ct,q) for kk in range(4) for ct in range(4) for q in range(2)]
    issued=0
    def issue(upto):
        nonlocal issued
        while issued<min(upto,len(reads)):
            kk,ct,q=reads[issued]
            a(f'ds_read_b64_tr_b16 {vr(AR+16*kk+4*ct+2*q,2)}, v{26+ct} offset:{4096*kk+2048*q}')
            issued+=1
    issue(14)
    for kk in range(4):
        for ct in range(4):
            need=2*(4*kk+ct)+2
            a(f's_waitcnt lgkmcnt({issued-need})')
            for kt in range(2):
                acc=ACC+16*kt+4*ct
                a(mfma(acc,AR+16*kk+4*ct,BC+16*kt+4*kk,None if kk==0 else acc))
            issue(need+14)
    a('s_nop 1')
    for kt in range(2):
        for p in range(2):
            t0=ACC+16*kt+8*p; t1=t0+4; o=O+4*((2*kt+p)&1)+ (0)
            o=O+4*(p)+ (8*kt if False else 0)
            o=[164,168,172,176][2*kt+p]
            a(f"""v_cvt_pk_bf16_f32 v{o}, v{t0}, v{t0+1}
            v_cvt_pk_bf16_f32 v{o+1}, v{t0+2}, v{t0+3}
            v_cvt_pk_bf16_f32 v{o+2}, v{t1}, v{t1+1}
            v_cvt_pk_bf16_f32 v{o+3}, v{t1+2}, v{t1+3}
            s_nop 1
            v_permlane16_swap_b32 v{o}, v{o+2}
            v_permlane16_swap_b32 v{o+1}, v{o+3}""")
            if kt==1 and p==0: pass
            a(f's_add_u32 s41, s38, {kt*524288}')
            a(f'buffer_store_dwordx4 {vr(o,4)}, v14, s[12:15], s41 offen offset:{64*p}')
    a.lab('L_p2_done')
    a('s_endpgm')
    return head(name)+a.txt()+desc(name,208)

def build(path):
    ref=open('cdna_kernels/%s.s.ref'%NAME).read()
    hdr=ref.split('; Override')[0]
    s=hdr
    s+="; 2D DFT (real part) of x via point-symmetric (Hartley) folding; DFT constants are generated in-kernel.\n"
    s+="; @launch kernel=fnet_p1_kernel grid=(272,1,1) block=(256,1,1) lds=49152\n"
    s+="; @launch kernel=%s_kernel grid=(256,1,1) block=(256,1,1) lds=16384\n"%NAME
    s+='.amdgcn_target "amdgcn-amd-amdhsa--gfx950"\n'
    s+=phase1('fnet_p1_kernel')+phase2(NAME+'_kernel')
    open(path,'w').write(s)
if __name__=='__main__':
    build(sys.argv[1] if len(sys.argv)>1 else 'cdna_kernels/%s.s'%NAME)
```

```python
import struct, sys
NAME='concat_heads__spectral_fnet__spectral_fnet__prompt'
def f2h(x): return '0x%08x'%struct.unpack('<I',struct.pack('<f',x))[0]
INSTR=False
OPT={}
class A:
    def __init__(s): s.l=[]
    def __call__(s,t):
        for x in t.strip('\n').split('\n'):
            s.l.append('  '+x.strip())
    def lab(s,n): s.l.append(n+':')
    def txt(s): return '\n'.join(s.l)+'\n'
def vr(a,n): return 'v[%d:%d]'%(a,a+n-1)
def mfma(d,a,b,c=None):
    return 'v_mfma_f32_16x16x32_bf16 %s, %s, %s, %s'%(vr(d,4),vr(a,4),vr(b,4),'0' if c is None else vr(c,4))
def srd(a,d,lo,hi,n):
    a(f's_mov_b32 s{d}, s{lo}\ns_and_b32 s{d+1}, s{hi}, 0xffff\ns_mov_b32 s{d+2}, {n}\ns_mov_b32 s{d+3}, 0x20000')
def desc(name,vg,sg):
    return f""".section .rodata,"a"
.p2align 6
.amdhsa_kernel {name}
  .amdhsa_next_free_vgpr {vg}
  .amdhsa_next_free_sgpr {sg}
  .amdhsa_accum_offset {(vg+3)//4*4}
  .amdhsa_group_segment_fixed_size 0
  .amdhsa_kernarg_size 104
  .amdhsa_user_sgpr_count 2
  .amdhsa_user_sgpr_kernarg_segment_ptr 1
  .amdhsa_system_sgpr_workgroup_id_x 1
.end_amdhsa_kernel
"""
def head(name):
    return f""".text
.globl {name}
.p2align 8
.type {name},@function
{name}:
"""
TS0=72
NTS=12
def ts(a,k):
    if INSTR: a(f's_memrealtime s[{TS0+2*k}:{TS0+1+2*k}]\ns_waitcnt lgkmcnt(0)')
def tsdump(a):
    if not INSTR: return
    a('s_waitcnt vmcnt(0)')
    ts(a,NTS-1)
    a('s_mov_b32 s8, s68\ns_and_b32 s9, s69, 0xffff\ns_mov_b32 s10, 0x2000000\ns_mov_b32 s11, 0x20000')
    a(f's_lshl_b32 s48, s2, 8\ns_lshl_b32 s49, s23, 6\ns_add_u32 s48, s48, s49\ns_add_u32 s48, s48, {16<<20}')
    a('s_mov_b64 exec, 1\nv_mov_b32 v1, 0')
    for k in range(NTS):
        a(f'v_mov_b32 v2, s{TS0+2*k}\nbuffer_store_dword v2, v1, s[8:11], s48 offen offset:{4*k}')

def fused(name):
    NSH=OPT.get('nsh',16)
    a=A()
    a("""s_lshr_b32 s20, s2, 4
    s_lshl_b32 s20, s20, 3
    s_and_b32 s21, s2, 7
    s_add_u32 s20, s20, s21
    s_cmp_ge_u32 s20, 130
    s_cbranch_scc1 L_idle""")
    if INSTR: a(f's_memrealtime s[{TS0}:{TS0+1}]')
    a("""s_load_dwordx2 s[4:5], s[0:1], 0
    s_load_dwordx2 s[6:7], s[0:1], 40
    s_load_dwordx4 s[64:67], s[0:1], 80
    s_load_dwordx2 s[68:69], s[0:1], 96
    v_lshrrev_b32 v1, 6, v0
    v_and_b32 v2, 63, v0
    s_bfe_u32 s22, s2, 0x10003
    v_readfirstlane_b32 s23, v1
    s_cmp_ge_u32 s20, 65
    s_cselect_b32 s24, 65, 0
    s_sub_u32 s25, s20, s24""")
    a("""s_cmp_eq_u32 s25, 64
    s_cselect_b32 s27, 0xffffffc0, s25
    s_cselect_b32 s28, %s, 0
    v_lshlrev_b32 v3, 4, v2
    s_lshl_b32 s29, s23, 9
    s_add_u32 s30, s29, s25
    s_lshl_b32 s30, s30, 10
    s_sub_u32 s31, s29, s27
    s_lshl_b32 s32, s23, 13
    s_cmp_lg_u32 s24, 0
    s_waitcnt lgkmcnt(0)
    s_cselect_b32 s4, s6, s4
    s_cselect_b32 s5, s7, s5"""%f2h(1/32))
    srd(a,8,4,5,'0x200000')
    for i in range(4):
        a(f"""s_add_u32 m0, s32, {2048*i}
        s_add_u32 s33, s30, {i*0x20000}
        s_add_u32 s34, s31, {128*i}
        buffer_load_dwordx4 v3, s[8:11], s33 offen lds
        s_and_b32 s34, s34, 2047
        s_add_u32 m0, s32, {2048*i+1024}
        s_lshl_b32 s34, s34, 10
        buffer_load_dwordx4 v3, s[8:11], s34 offen lds""")
    srd(a,12,68,69,'0x240000')
    srd(a,16,66,67,'256')
    if OPT.get('ws'):
        ST=OPT.get('st',256); NS=OPT['ws']
        a(f"""s_and_b32 s45, s2, {NS-1}
        s_cmp_lg_u32 s24, 0
        s_cselect_b32 s46, {NS}, 0
        s_add_u32 s45, s45, s46
        s_mul_i32 s45, s45, {ST}
        s_add_u32 s45, s45, 0x210000""")
    if not OPT.get('ws'): a(f"""s_lshl_b32 s45, s25, 1
    s_add_u32 s45, s45, s22
    s_and_b32 s45, s45, {NSH-1}
    s_lshl_b32 s45, s45, 2
    s_cmp_lg_u32 s24, 0
    s_cselect_b32 s46, 128, 0
    s_add_u32 s45, s45, s46""")
    if OPT.get('byte'):
        a(f"""s_lshl_b32 s45, s25, 1
        s_add_u32 s45, s45, s22
        s_and_b32 s45, s45, 127
        s_add_u32 s45, s45, s46""")
    C1,S1,NS1,TC,TS,ST2,F3=8,12,16,20,24,28,34
    a(f"""v_and_b32 v4, 15, v2
    v_lshrrev_b32 v5, 4, v2
    s_lshl_b32 s35, s22, 4
    v_add_u32 v6, s35, v4
    v_cvt_f32_u32 v6, v6
    v_lshlrev_b32 v7, 2, v5
    v_cvt_f32_u32 v7, v7
    v_cvt_f32_u32 v38, v4
    v_mul_f32 v39, {f2h(1/32)}, v6
    v_mul_f32 v6, {f2h(1/512)}, v6
    v_mul_f32 v40, v7, v39
    v_mul_f32 v41, v7, v6
    v_mul_f32 v42, {f2h(1/16)}, v38
    v_mul_f32 v43, v7, v42
    v_fma_f32 v44, v38, s28, v43""")
    t=48
    for q in range(2):
        for r in range(4):
            a(f'v_fmamk_f32 v{t+4*q+r}, v39, {f2h(16*q+r)}, v40')
    for k in range(8):
        a(f'v_cos_f32 v{t+8+k}, v{t+k}\nv_sin_f32 v{t+16+k}, v{t+k}')
    for r in range(4):
        a(f'v_fmamk_f32 v{t+24+r}, v6, {f2h(r)}, v41')
    for k in range(4):
        a(f'v_cvt_pk_bf16_f32 v{C1+k}, v{t+8+2*k}, v{t+9+2*k}\nv_cvt_pk_bf16_f32 v{S1+k}, v{t+16+2*k}, v{t+17+2*k}')
    for r in range(4):
        a(f'v_cos_f32 v{TC+r}, v{t+24+r}\nv_sin_f32 v{TS+r}, v{t+24+r}')
    for k in range(4):
        a(f'v_xor_b32 v{NS1+k}, 0x80008000, v{S1+k}')
    for r in range(4):
        a(f'v_fmamk_f32 v{t+r}, v42, {f2h(r)}, v43\nv_fmamk_f32 v{t+4+r}, v42, {f2h(r)}, v44')
    for r in range(4):
        a(f'v_cos_f32 v{t+8+r}, v{t+r}\nv_sin_f32 v{t+12+r}, v{t+r}')
    for r in range(4):
        a(f'v_add_f32 v{t+16+r}, {f2h(0.125)}, v{t+4+r}\nv_add_f32 v{t+20+r}, {f2h(-0.125)}, v{t+4+r}')
    a(f"""v_cvt_pk_bf16_f32 v{ST2+2}, v{t+8}, v{t+9}
    v_cvt_pk_bf16_f32 v{ST2+3}, v{t+10}, v{t+11}
    v_cvt_pk_bf16_f32 v{ST2+4}, v{t+12}, v{t+13}
    v_cvt_pk_bf16_f32 v{ST2+5}, v{t+14}, v{t+15}""")
    for r in range(4):
        a(f'v_cos_f32 v{t+24+r}, v{t+16+r}\nv_cos_f32 v{t+28+r}, v{t+20+r}')
    a(f'v_xor_b32 v{ST2}, 0x80008000, v{ST2+4}\nv_xor_b32 v{ST2+1}, 0x80008000, v{ST2+5}')
    for r in range(4):
        a(f'v_cvt_pk_bf16_f32 v{F3+r}, v{t+24+r}, v{t+28+r}')
    a(f"""v_lshlrev_b32 v38, 3, v2
    v_add_u32 v38, s32, v38
    v_bfe_u32 v40, v4, 1, 2
    v_xor_b32 v41, s23, v40
    v_xor_b32 v42, v5, v40
    v_lshlrev_b32 v43, 6, v4
    v_lshl_add_u32 v41, v41, 4, v43
    v_lshl_add_u32 v42, v42, 4, v43
    v_lshlrev_b32 v39, 12, v5
    v_add_u32 v39, v39, v41
    v_add_u32 v39, 0x8000, v39
    s_lshl_b32 s36, s23, 12
    s_add_u32 s36, s36, 0x8000
    v_add_u32 v6, s36, v42
    v_and_b32 v40, 1, v5
    v_lshrrev_b32 v41, 1, v5
    v_lshlrev_b32 v7, 10, v4
    v_lshl_add_u32 v7, v40, 6, v7
    v_lshl_add_u32 v7, v41, 4, v7
    s_lshl_b32 s37, s23, 8
    s_lshl_b32 s38, s22, 5
    s_add_u32 s37, s37, s38
    v_add_u32 v7, s37, v7
    s_lshl_b32 s39, s20, 14""")
    XA=40; D1=72; B2=104; D2=120; P=152; A3=168; D3=184; O=200
    def rd(i):
        for ab in range(2):
            for q in range(2):
                a(f'ds_read_b64_tr_b16 {vr(XA+8*i+4*ab+2*q,2)}, v38 offset:{(2*i+ab)*1024+512*q}')
    ts(a,1)
    a('s_waitcnt vmcnt(4)'); rd(0); rd(1)
    a('s_waitcnt vmcnt(0)'); rd(2); rd(3)
    if INSTR: a('s_waitcnt lgkmcnt(0)')
    ts(a,2)
    def st1(i):
        xa=XA+8*i; xb=xa+4; re=D1+8*i; im=re+4
        a(mfma(re,xa,C1)); a(mfma(im,xa,NS1)); a(mfma(re,xb,S1,re)); a(mfma(im,xb,C1,im))
    def tw(i):
        re=D1+8*i; im=re+4; o=[]
        tmp=XA+8*i
        for r in range(4):
            o.append(f'v_mul_f32 v{tmp+r}, v{re+r}, v{TC+r}')
            o.append(f'v_mul_f32 v{tmp+4+r}, v{im+r}, v{TC+r}')
        for r in range(4):
            o.append(f'v_fmac_f32 v{tmp+r}, v{im+r}, v{TS+r}')
            o.append(f'v_fma_f32 v{tmp+4+r}, -v{re+r}, v{TS+r}, v{tmp+4+r}')
        b=B2+4*i
        o+= [f'v_cvt_pk_bf16_f32 v{b}, v{tmp}, v{tmp+1}',f'v_cvt_pk_bf16_f32 v{b+1}, v{tmp+2}, v{tmp+3}',
             f'v_cvt_pk_bf16_f32 v{b+2}, v{tmp+4}, v{tmp+5}',f'v_cvt_pk_bf16_f32 v{b+3}, v{tmp+6}, v{tmp+7}']
        return o
    def st2(i):
        b=B2+4*i; re=D2+8*i; im=re+4
        return [mfma(re,ST2+2,b), mfma(im,ST2,b)]
    def pk(i):
        re=D2+8*i; im=re+4
        return [f'v_cvt_pk_bf16_f32 v{P+4*r+i}, v{re+r}, v{im+r}' for r in range(4)]
    a('s_waitcnt lgkmcnt(8)'); st1(0); st1(1)
    a('s_waitcnt lgkmcnt(0)'); st1(2); st1(3)
    for x in tw(0): a(x)
    for x in tw(1): a(x)
    for x in st2(0): a(x)
    for x in tw(2): a(x)
    for x in st2(1): a(x)
    for x in tw(3): a(x)
    for x in st2(2): a(x)
    for x in pk(0): a(x)
    for x in st2(3): a(x)
    for x in pk(1): a(x)
    a('s_nop 1')
    for x in pk(2): a(x)
    a('s_nop 1')
    for x in pk(3): a(x)
    for r in range(4):
        a(f'ds_write_b128 v39, {vr(P+4*r,4)} offset:{1024*r}')
    a('s_waitcnt lgkmcnt(0)')
    ts(a,3)
    a('s_barrier')
    for u in range(4):
        a(f'ds_read_b128 {vr(A3+4*u,4)}, v6 offset:{1024*u}')
    if OPT.get('ws'):
        a('s_cmp_lg_u32 s23, 0\ns_cbranch_scc1 L_noif\nv_mov_b32 v18, 0\nbuffer_load_dword v19, v18, s[16:19], 0 offen sc1')
        a.lab('L_noif')
    for u in range(4):
        a(f's_waitcnt lgkmcnt({3-u})'); a(mfma(D3+4*u,A3+4*u,F3))
    a('s_nop 4')
    for p in range(2):
        if p==1: a('s_nop 1')
        t0=D3+8*p; t1=t0+4; o=O+4*p
        a(f"""v_cvt_pk_bf16_f32 v{o}, v{t0}, v{t0+1}
        v_cvt_pk_bf16_f32 v{o+1}, v{t0+2}, v{t0+3}
        v_cvt_pk_bf16_f32 v{o+2}, v{t1}, v{t1+1}
        v_cvt_pk_bf16_f32 v{o+3}, v{t1+2}, v{t1+3}
        s_nop 1
        v_permlane16_swap_b32 v{o}, v{o+2}
        v_permlane16_swap_b32 v{o+1}, v{o+3}
        s_nop 1
        buffer_store_dwordx4 {vr(o,4)}, v7, s[12:15], s39 offen offset:{128*p} sc1""")
    ts(a,4)
    a("""s_and_b32 s20, s2, 7
    s_bfe_u32 s21, s2, 0x10007
    s_bfe_u32 s22, s2, 0x10006
    s_bfe_u32 s24, s2, 0x30003
    s_sub_u32 s25, 16, s20
    s_cmp_eq_u32 s20, 0
    s_cselect_b32 s25, 8, s25
    s_cmp_lg_u32 s22, 0
    s_cselect_b32 s25, s25, s20
    s_sub_u32 s26, 16, s25
    s_and_b32 s26, s26, 15
    s_sub_u32 s27, 7, s24""")
    a("""s_mul_i32 s28, s21, 65
    s_lshl_b32 s29, s23, 4
    s_add_u32 s28, s28, s29
    s_lshl_b32 s28, s28, 14
    s_lshl_b32 s29, s25, 10
    s_lshl_b32 s30, s24, 7
    s_add_u32 s29, s29, s30
    s_add_u32 s29, s29, s28
    s_lshl_b32 s30, s26, 10
    s_add_u32 s30, s30, s28
    s_lshl_b32 s31, s27, 7
    s_add_u32 s31, s31, s30
    v_lshrrev_b32 v3, 3, v2
    v_and_b32 v1, 7, v2
    v_lshlrev_b32 v6, 1, v5
    v_xor_b32 v6, v1, v6
    v_lshlrev_b32 v0, 14, v3
    v_lshl_add_u32 v8, v1, 4, v0
    v_lshlrev_b32 v9, 4, v1
    v_sub_u32 v9, 114, v9
    v_add_u32 v9, v0, v9
    s_cmp_eq_u32 s23, 0
    s_cselect_b32 s32, 0x100000, 0
    v_mov_b32 v10, s32
    v_cmp_gt_u32 vcc, 8, v2
    s_lshl_b32 s33, s23, 11
    s_add_u32 s34, s29, 0x20000
    v_cndmask_b32 v10, 0, v10, vcc
    v_add_u32 v11, v9, v10
    v_add_u32 v12, v0, v10
    s_add_u32 s35, s31, 0x20000""")
    a("""v_lshlrev_b32 v13, 7, v3
    v_lshl_add_u32 v13, v6, 4, v13
    v_add_u32 v13, s33, v13
    v_bfe_u32 v30, v2, 2, 2
    v_and_b32 v31, 3, v2
    v_lshl_add_u32 v32, v5, 2, v30
    v_bfe_u32 v33, v32, 1, 2
    v_lshlrev_b32 v32, 7, v32
    v_lshl_add_u32 v32, v31, 3, v32""")
    for ct in range(4):
        a(f'v_xor_b32 v{26+ct}, {ct}, v33\nv_lshl_add_u32 v{26+ct}, v{26+ct}, 5, v32')
    a("""v_lshlrev_b32 v14, 15, v4
    v_and_b32 v30, 1, v5
    v_lshl_add_u32 v14, v30, 5, v14
    v_lshrrev_b32 v30, 1, v5
    v_lshl_add_u32 v14, v30, 4, v14
    s_lshl_b32 s37, s23, 9
    s_add_u32 s37, s37, s25
    s_lshl_b32 s38, s37, 11
    s_lshl_b32 s39, s21, 10
    s_add_u32 s38, s38, s39
    s_lshl_b32 s39, s24, 7
    s_add_u32 s38, s38, s39""")
    lo,ex=(2,130//NSH)
    a(f"""v_and_b32 v35, {NSH-1}, v2
    v_cmp_gt_u32 vcc, {lo}, v35
    v_mov_b32 v15, {ex}
    s_lshl_b32 s46, s21, 7
    v_lshlrev_b32 v35, 2, v35
    v_addc_co_u32 v15, vcc, 0, v15, vcc
    v_add_u32 v35, s46, v35""")
    if OPT.get('byte'): a('v_mov_b32 v15, 0x01010101')
    if OPT.get('ws'):
        a(f"""v_and_b32 v35, 7, v2
        v_cmp_eq_u32 vcc, s21, v35
        v_mov_b32 v15, {128//NS}
        v_and_b32 v35, {NS-1}, v2
        s_mul_i32 s46, s21, {NS*ST}
        v_cndmask_b32 v16, 0, {16//NS}, vcc
        v_add_u32 v15, v15, v16
        s_add_u32 s46, s46, 0x210000
        v_mul_u32_u24 v35, {ST}, v35
        v_add_u32 v35, s46, v35""")
    BC=36; AR=68; ACC=132; T0=172; MI=16; NA=68
    a(f"""v_lshlrev_b32 v30, 4, v4
    v_add_u32 v30, s37, v30
    v_cvt_f32_u32 v30, v30
    v_lshlrev_b32 v31, 2, v5
    v_cvt_f32_u32 v31, v31
    v_mul_f32 v30, {f2h(1/2048)}, v30
    v_add_f32 v32, {f2h(0.125)}, v30
    s_cmp_lg_u32 s25, 0
    s_cselect_b32 s40, 1, 0
    v_add_u32 v33, s40, v4
    v_and_b32 v33, 1, v33
    v_lshlrev_b32 v33, 31, v33
    v_xor_b32 v33, {f2h(0.7071067811865476)}, v33
    v_mov_b32 v34, {f2h(0.125)}
    v_cmp_eq_u32 s[42:43], 0, v5""")
    def consts(kt,kks):
        tf=30 if kt==0 else 32
        a(f'v_fma_f32 v{T0}, v31, v{tf}, -v34\nv_fma_f32 v{T0+1}, v31, v{tf}, v34')
        for kk in kks:
            base=T0+(0 if kk<2 else 1)
            tt=T0+2+(kk&1)*16
            for q in range(2):
                for r in range(4):
                    K=32*(kk&1)+16*q+r
                    a(f'v_fmamk_f32 v{tt+4*q+r}, v{tf}, {f2h(K)}, v{base}')
            for k in range(8): a(f'v_cos_f32 v{tt+8+k}, v{tt+k}')
            if kk==2:
                a(f'v_cndmask_b32 v{tt+8}, v{tt+8}, v33, s[42:43]')
            else:
                a('s_nop 0')
            for k in range(4):
                a(f'v_cvt_pk_bf16_f32 v{BC+16*kt+4*kk+k}, v{tt+8+2*k}, v{tt+9+2*k}')
    pre=OPT.get('pre',0)
    groups=[(kt,kk) for kt in range(2) for kk in range(4)]
    mid=OPT.get('mid',4)
    for kt,kk in groups[:pre]: consts(kt,[kk])
    a('s_waitcnt vmcnt(0)')
    ts(a,5)
    a('s_barrier')
    if OPT.get('ws'):
        a("""s_cmp_lg_u32 s23, 0
        s_cbranch_scc1 L_nosig
        s_mov_b32 s47, 0x40000""")
        a.lab('L_ipoll')
        a("""v_cmp_eq_u32 vcc, 0, v19
        s_cbranch_vccz L_iok
        s_sub_u32 s47, s47, 1
        s_cbranch_scc1 L_iok
        v_mov_b32 v16, 0
        buffer_load_dword v19, v16, s[16:19], 0 offen sc1
        s_waitcnt vmcnt(0)
        s_branch L_ipoll""")
        a.lab('L_iok')
        a("""s_mov_b64 exec, 1
        v_mov_b32 v16, s45
        v_mov_b32 v17, 1
        buffer_atomic_add v17, v16, s[12:15], 0 offen
        s_mov_b64 exec, -1""")
        if OPT.get('tsig'): ts(a,6)
    else: a("""s_cmp_lg_u32 s23, 0
    s_cbranch_scc1 L_nosig
    s_mov_b64 exec, 1
    v_mov_b32 v16, s45
    v_mov_b32 v17, 1
    %s
    s_mov_b64 exec, -1"""%('buffer_store_byte v17, v16, s[16:19], 0 offen sc1' if OPT.get('byte') else 'buffer_atomic_add v17, v16, s[16:19], 0 offen'+(' sc0' if OPT.get('atret') else '')))
    if OPT.get('atret'):
        a('s_waitcnt vmcnt(0)'); ts(a,6)
    a.lab('L_nosig')
    a("""s_cmp_ge_u32 s2, 256
    s_cbranch_scc1 L_done""")
    a("""s_cmp_lg_u32 s23, 0
    s_cbranch_scc1 L_nopoll0
    buffer_load_dword v18, v35, s[POLLSRD], 0 offen sc1""")
    a.lab('L_nopoll0')
    for kt,kk in groups[pre:mid]: consts(kt,[kk])
    if not OPT.get('atret') and not OPT.get('tsig'): ts(a,6)
    a("""s_cmp_lg_u32 s23, 0
    s_cbranch_scc1 L_ready
    s_mov_b32 s47, %s"""%('0' if OPT.get('nopoll') else '0x40000'))
    a.lab('L_poll')
    a("""s_waitcnt vmcnt(0)
    v_cmp_ne_u32 vcc, v18, v15
    s_cbranch_vccz L_ready
    s_sub_u32 s47, s47, 1
    s_cbranch_scc1 L_ready
    buffer_load_dword v18, v35, s[POLLSRD], 0 offen sc1
    s_branch L_poll""")
    a.lab('L_ready')
    a('s_barrier')
    ts(a,7)
    a(f"""buffer_load_dwordx4 {vr(NA,4)}, v8, s[12:15], s29 offen sc1
    buffer_load_dwordx4 {vr(MI,4)}, v11, s[12:15], s31 offen sc1
    buffer_load_dwordx4 {vr(NA+4,4)}, v8, s[12:15], s34 offen sc1
    buffer_load_dwordx4 {vr(MI+4,4)}, v9, s[12:15], s35 offen sc1
    s_cmp_lg_u32 s24, 0
    s_cbranch_scc1 L_p2_nz
    s_add_u32 s36, s30, 0x20000
    buffer_load_ushort v24, v12, s[12:15], s30 offen sc1
    buffer_load_ushort v25, v0, s[12:15], s36 offen sc1""")
    a.lab('L_p2_nz')
    srd(a,8,64,65,'0x400000')
    for kt,kk in groups[mid:]: consts(kt,[kk])
    a('s_waitcnt vmcnt(0)')
    ts(a,8)
    a(f'ds_write_b128 v13, {vr(NA,4)}\nds_write_b128 v13, {vr(NA+4,4)} offset:1024')
    a('s_cmp_lg_u32 s24, 0\ns_cbranch_scc1 L_p2_nofix')
    a(f"""s_mov_b32 s44, 0xffff
    v_cmp_eq_u32 vcc, 0, v1
    v_lshlrev_b32 v24, 16, v24
    v_lshlrev_b32 v25, 16, v25
    v_bfi_b32 v24, s44, v{MI+3}, v24
    v_bfi_b32 v25, s44, v{MI+7}, v25
    v_cndmask_b32 v{MI+3}, v{MI+3}, v24, vcc
    v_cndmask_b32 v{MI+7}, v{MI+7}, v25, vcc""")
    a.lab('L_p2_nofix')
    for i in range(2):
        for k in range(4):
            a(f'v_alignbit_b32 v{T0+4*i+k}, v{MI+4*i+3-k}, v{MI+4*i+3-k}, 16')
    a(f'ds_write_b128 v13, {vr(T0,4)} offset:8192\nds_write_b128 v13, {vr(T0+4,4)} offset:9216')
    a('s_waitcnt lgkmcnt(0)')
    a('s_barrier')
    ts(a,9)
    reads=[(kk,ct,q) for kk in range(4) for ct in range(4) for q in range(2)]
    issued=0
    def issue(upto):
        nonlocal issued
        while issued<min(upto,len(reads)):
            kk,ct,q=reads[issued]
            a(f'ds_read_b64_tr_b16 {vr(AR+16*kk+4*ct+2*q,2)}, v{26+ct} offset:{4096*kk+2048*q}')
            issued+=1
    issue(14)
    for kk in range(4):
        for ct in range(4):
            need=2*(4*kk+ct)+2
            a(f's_waitcnt lgkmcnt({issued-need})')
            for kt in range(2):
                acc=ACC+16*kt+4*ct
                a(mfma(acc,AR+16*kk+4*ct,BC+16*kt+4*kk,None if kk==0 else acc))
            issue(need+14)
    a('s_nop 1')
    for kt in range(2):
        for p in range(2):
            t0=ACC+16*kt+8*p; t1=t0+4
            o=[164,168,172,176][2*kt+p]
            a(f"""v_cvt_pk_bf16_f32 v{o}, v{t0}, v{t0+1}
            v_cvt_pk_bf16_f32 v{o+1}, v{t0+2}, v{t0+3}
            v_cvt_pk_bf16_f32 v{o+2}, v{t1}, v{t1+1}
            v_cvt_pk_bf16_f32 v{o+3}, v{t1+2}, v{t1+3}
            s_nop 1
            v_permlane16_swap_b32 v{o}, v{o+2}
            v_permlane16_swap_b32 v{o+1}, v{o+3}""")
            a(f's_add_u32 s41, s38, {kt*524288}')
            a(f'buffer_store_dwordx4 {vr(o,4)}, v14, s[8:11], s41 offen offset:{64*p}')
    ts(a,10)
    a.lab('L_done')
    tsdump(a)
    a('s_endpgm')
    a.lab('L_idle')
    if OPT.get('ws'):
        a(f"""s_cmp_lg_u32 s2, 258
        s_cbranch_scc1 L_end""")
        ts(a,0)
        a(f"""s_nop 0
        s_load_dwordx4 s[64:67], s[0:1], 88
        v_cmp_gt_u32 vcc, {2*NS}, v0
        s_and_b64 exec, exec, vcc
        s_cbranch_execz L_end
        v_mul_u32_u24 v1, {ST}, v0
        v_mov_b32 v2, 0
        v_add_u32 v1, 0x210000, v1
        s_waitcnt lgkmcnt(0)""")
        srd(a,12,66,67,'0x240000')
        srd(a,16,64,65,'256')
        a("""buffer_store_dword v2, v1, s[12:15], 0 offen sc1
        v_mov_b32 v3, 1
        s_mov_b64 exec, 1
        s_waitcnt vmcnt(0)""")
        ts(a,1)
        a('buffer_store_dword v3, v2, s[16:19], 0 offen sc1')
        if INSTR:
            a('s_mov_b32 s68, s66\ns_mov_b32 s69, s67\ns_mov_b32 s23, 0\ns_branch L_done')
    a.lab('L_end')
    a('s_endpgm')
    t=a.txt().replace('s[POLLSRD]','s[12:15]' if OPT.get('ws') else 's[16:19]')
    return head(name)+t+desc(name,208,96)

def build(path):
    ref=open('cdna_kernels/%s.s.ref'%NAME).read()
    hdr=ref.split('; Override')[0]
    s=hdr
    s+="; 2D DFT (real part) of x via point-symmetric (Hartley) folding; DFT constants are generated in-kernel.\n"
    s+="; One launch: stage 1 publishes T (write-through) and signals counters in d_debug; stage 2 waits on them.\n"
    s+="; @launch grid=(272,1,1) block=(256,1,1) lds=49152\n"
    s+='.amdgcn_target "amdgcn-amd-amdhsa--gfx950"\n'
    s+=fused(NAME+'_kernel')
    open(path,'w').write(s)
if __name__=='__main__':
    for x in sys.argv[2:]:
        if x=='instr': INSTR=True
        else:
            k,v=x.split('='); OPT[k]=int(v)
    build(sys.argv[1])
```

```python
import struct, sys
NAME='concat_heads__spectral_fnet__spectral_fnet__prompt'
def f2h(x): return '0x%08x'%struct.unpack('<I',struct.pack('<f',x))[0]
INSTR=False
OPT={}
class A:
    def __init__(s): s.l=[]
    def __call__(s,t):
        for x in t.strip('\n').split('\n'):
            s.l.append('  '+x.strip())
    def lab(s,n): s.l.append(n+':')
    def txt(s): return '\n'.join(s.l)+'\n'
def vr(a,n): return 'v[%d:%d]'%(a,a+n-1)
def mfma(d,a,b,c=None):
    return 'v_mfma_f32_16x16x32_bf16 %s, %s, %s, %s'%(vr(d,4),vr(a,4),vr(b,4),'0' if c is None else vr(c,4))
def srd(a,d,lo,hi,n):
    a(f's_mov_b32 s{d}, s{lo}\ns_and_b32 s{d+1}, s{hi}, 0xffff\ns_mov_b32 s{d+2}, {n}\ns_mov_b32 s{d+3}, 0x20000')
def desc(name,vg,sg):
    return f""".section .rodata,"a"
.p2align 6
.amdhsa_kernel {name}
  .amdhsa_next_free_vgpr {vg}
  .amdhsa_next_free_sgpr {sg}
  .amdhsa_accum_offset {(vg+3)//4*4}
  .amdhsa_group_segment_fixed_size 0
  .amdhsa_kernarg_size 104
  .amdhsa_user_sgpr_count 2
  .amdhsa_user_sgpr_kernarg_segment_ptr 1
  .amdhsa_system_sgpr_workgroup_id_x 1
.end_amdhsa_kernel
"""
def head(name):
    return f""".text
.globl {name}
.p2align 8
.type {name},@function
{name}:
"""
TS0=72
NTS=12
def ts(a,k):
    if INSTR: a(f's_memrealtime s[{TS0+2*k}:{TS0+1+2*k}]\ns_waitcnt lgkmcnt(0)')
def tsdump(a):
    if not INSTR: return
    a('s_waitcnt vmcnt(0)')
    ts(a,NTS-1)
    a('s_mov_b32 s8, s68\ns_and_b32 s9, s69, 0xffff\ns_mov_b32 s10, 0x2000000\ns_mov_b32 s11, 0x20000')
    a(f's_lshl_b32 s48, s2, 8\ns_lshl_b32 s49, s23, 6\ns_add_u32 s48, s48, s49\ns_add_u32 s48, s48, {16<<20}')
    a('s_mov_b64 exec, 1\nv_mov_b32 v1, 0')
    for k in range(NTS):
        a(f'v_mov_b32 v2, s{TS0+2*k}\nbuffer_store_dword v2, v1, s[8:11], s48 offen offset:{4*k}')

def fused(name):
    NSH=OPT.get('nsh',16)
    a=A()
    a("""s_lshr_b32 s20, s2, 4
    s_lshl_b32 s20, s20, 3
    s_and_b32 s21, s2, 7
    s_add_u32 s20, s20, s21
    s_cmp_ge_u32 s20, 130
    s_cbranch_scc1 L_idle""")
    if OPT.get('prio'): a('s_setprio %d'%OPT['prio'])
    if INSTR: a(f's_memrealtime s[{TS0}:{TS0+1}]')
    TAB=OPT.get('tab')
    a("""s_load_dwordx2 s[4:5], s[0:1], 0
    s_load_dwordx2 s[6:7], s[0:1], 40""")
    if TAB: a("""s_load_dwordx4 s[52:55], s[0:1], 24
    s_load_dwordx4 s[56:59], s[0:1], 64""")
    a("""s_load_dwordx4 s[64:67], s[0:1], 80
    s_load_dwordx2 s[68:69], s[0:1], 96
    v_lshrrev_b32 v1, 6, v0
    v_and_b32 v2, 63, v0
    s_bfe_u32 s22, s2, 0x10003
    v_readfirstlane_b32 s23, v1
    s_cmp_ge_u32 s20, 65
    s_cselect_b32 s24, 65, 0
    s_sub_u32 s25, s20, s24""")
    a("""s_cmp_eq_u32 s25, 64
    s_cselect_b32 s27, 0xffffffc0, s25
    s_cselect_b32 s28, %s, 0
    v_lshlrev_b32 v3, 4, v2
    s_lshl_b32 s29, s23, 9
    s_add_u32 s30, s29, s25
    s_lshl_b32 s30, s30, 10
    s_sub_u32 s31, s29, s27
    s_lshl_b32 s32, s23, 13"""%f2h(1/32))
    C1,S1,NS1,TC,TS,ST2,F3=8,12,16,20,24,28,34
    if TAB:
        a("""v_and_b32 v4, 15, v2
        v_lshrrev_b32 v5, 4, v2
        s_lshl_b32 s35, s22, 18
        v_lshlrev_b32 v43, 3, v5
        s_lshl_b32 s36, s22, 14
        v_lshl_add_u32 v40, v4, 14, v43
        v_lshl_add_u32 v41, v4, 10, v43
        v_lshl_add_u32 v42, v4, 15, v43""")
    a("""s_cmp_lg_u32 s24, 0
    s_waitcnt lgkmcnt(0)
    s_cselect_b32 s4, s6, s4
    s_cselect_b32 s5, s7, s5""")
    if OPT.get('xt'): ts(a,1)
    if TAB:
        a("""s_cselect_b32 s52, s56, s52
        s_cselect_b32 s53, s57, s53
        s_cselect_b32 s54, s58, s54
        s_cselect_b32 s55, s59, s55""")
        srd(a,56,52,53,'0x80000')
        srd(a,60,54,55,'0x80000')
        a(f"""buffer_load_dwordx2 {vr(C1,2)}, v40, s[56:59], s35 offen
        buffer_load_dwordx2 {vr(NS1,2)}, v40, s[60:63], s35 offen
        buffer_load_dwordx2 {vr(C1+2,2)}, v40, s[56:59], s35 offen offset:32
        buffer_load_dwordx2 {vr(NS1+2,2)}, v40, s[60:63], s35 offen offset:32""")
    srd(a,8,4,5,'0x200000')
    for i in range(4):
        a(f"""s_add_u32 m0, s32, {2048*i}
        s_add_u32 s33, s30, {i*0x20000}
        s_add_u32 s34, s31, {128*i}
        buffer_load_dwordx4 v3, s[8:11], s33 offen lds
        s_and_b32 s34, s34, 2047
        s_add_u32 m0, s32, {2048*i+1024}
        s_lshl_b32 s34, s34, 10
        buffer_load_dwordx4 v3, s[8:11], s34 offen lds""")
    if TAB:
        a(f"""buffer_load_dwordx2 v[208:209], v41, s[56:59], s36 offen
        buffer_load_dwordx2 v[210:211], v41, s[60:63], s36 offen
        buffer_load_dwordx2 {vr(ST2+2,2)}, v42, s[56:59], 0 offen
        buffer_load_dwordx2 {vr(ST2,2)}, v42, s[60:63], 0 offen""")
    if OPT.get('xt'):
        ts(a,2); a('s_waitcnt vmcnt(4)'); ts(a,3); a('s_waitcnt vmcnt(0)'); ts(a,4); a('s_branch L_done')
    srd(a,12,68,69,'0x240000')
    srd(a,16,66,67,'256')
    if OPT.get('ws'):
        ST=OPT.get('st',256); NS=OPT['ws']
        a(f"""s_and_b32 s45, s2, {NS-1}
        s_cmp_lg_u32 s24, 0
        s_cselect_b32 s46, {NS}, 0
        s_add_u32 s45, s45, s46
        s_mul_i32 s45, s45, {ST}
        s_add_u32 s45, s45, 0x210000""")
    if not OPT.get('ws'): a(f"""s_lshl_b32 s45, s25, 1
    s_add_u32 s45, s45, s22
    s_and_b32 s45, s45, {NSH-1}
    s_lshl_b32 s45, s45, 2
    s_cmp_lg_u32 s24, 0
    s_cselect_b32 s46, 128, 0
    s_add_u32 s45, s45, s46""")
    if OPT.get('byte'):
        a(f"""s_lshl_b32 s45, s25, 1
        s_add_u32 s45, s45, s22
        s_and_b32 s45, s45, 127
        s_add_u32 s45, s45, s46""")
    if TAB:
        t=72
        a(f"""v_cvt_f32_u32 v{t}, v4
        v_lshlrev_b32 v{t+1}, 2, v5
        v_cvt_f32_u32 v{t+1}, v{t+1}
        v_mul_f32 v{t+2}, {f2h(1/16)}, v{t}
        v_mul_f32 v{t+3}, v{t+1}, v{t+2}
        v_fma_f32 v{t+3}, v{t}, s28, v{t+3}
        v_add_f32 v{t+4}, {f2h(0.125)}, v{t+3}
        v_add_f32 v{t+5}, {f2h(-0.125)}, v{t+3}""")
        for r in range(4):
            if r==0: continue
            a(f'v_fmamk_f32 v{t+6+2*r}, v{t+2}, {f2h(r)}, v{t+4}\nv_fmamk_f32 v{t+7+2*r}, v{t+2}, {f2h(r)}, v{t+5}')
        a(f'v_cos_f32 v{t+16}, v{t+4}\nv_cos_f32 v{t+17}, v{t+5}')
        for r in range(1,4):
            a(f'v_cos_f32 v{t+16+2*r}, v{t+6+2*r}\nv_cos_f32 v{t+17+2*r}, v{t+7+2*r}')
        a('s_nop 0')
        for r in range(4):
            a(f'v_cvt_pk_bf16_f32 v{F3+r}, v{t+16+2*r}, v{t+17+2*r}')
    else:
        a(f"""v_and_b32 v4, 15, v2
        v_lshrrev_b32 v5, 4, v2
        s_lshl_b32 s35, s22, 4
        v_add_u32 v6, s35, v4
        v_cvt_f32_u32 v6, v6
        v_lshlrev_b32 v7, 2, v5
        v_cvt_f32_u32 v7, v7
        v_cvt_f32_u32 v38, v4
        v_mul_f32 v39, {f2h(1/32)}, v6
        v_mul_f32 v6, {f2h(1/512)}, v6
        v_mul_f32 v40, v7, v39
        v_mul_f32 v41, v7, v6
        v_mul_f32 v42, {f2h(1/16)}, v38
        v_mul_f32 v43, v7, v42
        v_fma_f32 v44, v38, s28, v43""")
        t=48
        for q in range(2):
            for r in range(4):
                a(f'v_fmamk_f32 v{t+4*q+r}, v39, {f2h(16*q+r)}, v40')
        for k in range(8):
            a(f'v_cos_f32 v{t+8+k}, v{t+k}\nv_sin_f32 v{t+16+k}, v{t+k}')
        for r in range(4):
            a(f'v_fmamk_f32 v{t+24+r}, v6, {f2h(r)}, v41')
        for k in range(4):
            a(f'v_cvt_pk_bf16_f32 v{C1+k}, v{t+8+2*k}, v{t+9+2*k}\nv_cvt_pk_bf16_f32 v{S1+k}, v{t+16+2*k}, v{t+17+2*k}')
        for r in range(4):
            a(f'v_cos_f32 v{TC+r}, v{t+24+r}\nv_sin_f32 v{TS+r}, v{t+24+r}')
        for k in range(4):
            a(f'v_xor_b32 v{NS1+k}, 0x80008000, v{S1+k}')
        for r in range(4):
            a(f'v_fmamk_f32 v{t+r}, v42, {f2h(r)}, v43\nv_fmamk_f32 v{t+4+r}, v42, {f2h(r)}, v44')
        for r in range(4):
            a(f'v_cos_f32 v{t+8+r}, v{t+r}\nv_sin_f32 v{t+12+r}, v{t+r}')
        for r in range(4):
            a(f'v_add_f32 v{t+16+r}, {f2h(0.125)}, v{t+4+r}\nv_add_f32 v{t+20+r}, {f2h(-0.125)}, v{t+4+r}')
        a(f"""v_cvt_pk_bf16_f32 v{ST2+2}, v{t+8}, v{t+9}
        v_cvt_pk_bf16_f32 v{ST2+3}, v{t+10}, v{t+11}
        v_cvt_pk_bf16_f32 v{ST2+4}, v{t+12}, v{t+13}
        v_cvt_pk_bf16_f32 v{ST2+5}, v{t+14}, v{t+15}""")
        for r in range(4):
            a(f'v_cos_f32 v{t+24+r}, v{t+16+r}\nv_cos_f32 v{t+28+r}, v{t+20+r}')
        a(f'v_xor_b32 v{ST2}, 0x80008000, v{ST2+4}\nv_xor_b32 v{ST2+1}, 0x80008000, v{ST2+5}')
        for r in range(4):
            a(f'v_cvt_pk_bf16_f32 v{F3+r}, v{t+24+r}, v{t+28+r}')
    a(f"""v_lshlrev_b32 v38, 3, v2
    v_add_u32 v38, s32, v38
    v_bfe_u32 v40, v4, 1, 2
    v_xor_b32 v41, s23, v40
    v_xor_b32 v42, v5, v40
    v_lshlrev_b32 v43, 6, v4
    v_lshl_add_u32 v41, v41, 4, v43
    v_lshl_add_u32 v42, v42, 4, v43
    v_lshlrev_b32 v39, 12, v5
    v_add_u32 v39, v39, v41
    v_add_u32 v39, 0x8000, v39
    s_lshl_b32 s36, s23, 12
    s_add_u32 s36, s36, 0x8000
    v_add_u32 v6, s36, v42
    v_and_b32 v40, 1, v5
    v_lshrrev_b32 v41, 1, v5
    v_lshlrev_b32 v7, 10, v4
    v_lshl_add_u32 v7, v40, 6, v7
    v_lshl_add_u32 v7, v41, 4, v7
    s_lshl_b32 s37, s23, 8
    s_lshl_b32 s38, s22, 5
    s_add_u32 s37, s37, s38
    v_add_u32 v7, s37, v7
    s_lshl_b32 s39, s20, 14""")
    if OPT.get('tshape')==1:
        a("""v_lshlrev_b32 v7, 10, v4
        v_lshl_add_u32 v7, v40, 5, v7
        v_lshl_add_u32 v7, v41, 4, v7
        s_lshl_b32 s37, s23, 7
        s_lshl_b32 s38, s22, 9
        s_add_u32 s37, s37, s38
        v_add_u32 v7, s37, v7""")
    if OPT.get('tshape')==2:
        a("""v_and_b32 v42, 7, v4
        v_lshrrev_b32 v43, 3, v4
        v_lshlrev_b32 v7, 10, v42
        v_lshl_add_u32 v7, v43, 6, v7
        v_lshl_add_u32 v7, v40, 5, v7
        v_lshl_add_u32 v7, v41, 4, v7
        s_lshl_b32 s37, s23, 7
        s_lshl_b32 s38, s22, 9
        s_add_u32 s37, s37, s38
        v_add_u32 v7, s37, v7
        s_add_u32 s40, s39, 8192""")
    XA=40; D1=72; B2=104; D2=120; P=152; A3=168; D3=184; O=200
    def rd(i):
        for ab in range(2):
            for q in range(2):
                a(f'ds_read_b64_tr_b16 {vr(XA+8*i+4*ab+2*q,2)}, v38 offset:{(2*i+ab)*1024+512*q}')
    ts(a,1)
    if TAB:
        a('s_waitcnt vmcnt(8)'); rd(0); rd(1)
        for k in range(4): a(f'v_xor_b32 v{S1+k}, 0x80008000, v{NS1+k}')
        a('s_waitcnt vmcnt(4)'); rd(2); rd(3)
    else:
        a('s_waitcnt vmcnt(4)'); rd(0); rd(1)
        a('s_waitcnt vmcnt(0)'); rd(2); rd(3)
    if INSTR: a('s_waitcnt lgkmcnt(0)')
    ts(a,2)
    def st1(i):
        xa=XA+8*i; xb=xa+4; re=D1+8*i; im=re+4
        a(mfma(re,xa,C1)); a(mfma(im,xa,NS1)); a(mfma(re,xb,S1,re)); a(mfma(im,xb,C1,im))
    def tw(i):
        re=D1+8*i; im=re+4; o=[]
        tmp=XA+8*i
        for r in range(4):
            o.append(f'v_mul_f32 v{tmp+r}, v{re+r}, v{TC+r}')
            o.append(f'v_mul_f32 v{tmp+4+r}, v{im+r}, v{TC+r}')
        for r in range(4):
            if TAB:
                o.append(f'v_fma_f32 v{tmp+r}, -v{im+r}, v{TS+r}, v{tmp+r}')
                o.append(f'v_fmac_f32 v{tmp+4+r}, v{re+r}, v{TS+r}')
            else:
                o.append(f'v_fmac_f32 v{tmp+r}, v{im+r}, v{TS+r}')
                o.append(f'v_fma_f32 v{tmp+4+r}, -v{re+r}, v{TS+r}, v{tmp+4+r}')
        b=B2+4*i
        o+= [f'v_cvt_pk_bf16_f32 v{b}, v{tmp}, v{tmp+1}',f'v_cvt_pk_bf16_f32 v{b+1}, v{tmp+2}, v{tmp+3}',
             f'v_cvt_pk_bf16_f32 v{b+2}, v{tmp+4}, v{tmp+5}',f'v_cvt_pk_bf16_f32 v{b+3}, v{tmp+6}, v{tmp+7}']
        return o
    def st2(i):
        b=B2+4*i; re=D2+8*i; im=re+4
        return [mfma(re,ST2+2,b), mfma(im,ST2,b)]
    def pk(i):
        re=D2+8*i; im=re+4
        return [f'v_cvt_pk_bf16_f32 v{P+4*r+i}, v{re+r}, v{im+r}' for r in range(4)]
    a('s_waitcnt lgkmcnt(8)'); st1(0); st1(1)
    a('s_waitcnt lgkmcnt(0)'); st1(2); st1(3)
    if TAB:
        a(f"""s_waitcnt vmcnt(0)
        v_lshlrev_b32 v{TC}, 16, v0R
        v_and_b32 v{TC+1}, 0xffff0000, v0R
        v_lshlrev_b32 v{TC+2}, 16, v1R
        v_and_b32 v{TC+3}, 0xffff0000, v1R
        v_lshlrev_b32 v{TS}, 16, v2R
        v_and_b32 v{TS+1}, 0xffff0000, v2R
        v_lshlrev_b32 v{TS+2}, 16, v3R
        v_and_b32 v{TS+3}, 0xffff0000, v3R
        v_xor_b32 v{ST2+4}, 0x80008000, v{ST2}
        v_xor_b32 v{ST2+5}, 0x80008000, v{ST2+1}""".replace('v0R','v208').replace('v1R','v209').replace('v2R','v210').replace('v3R','v211'))
    for x in tw(0): a(x)
    for x in tw(1): a(x)
    for x in st2(0): a(x)
    for x in tw(2): a(x)
    for x in st2(1): a(x)
    for x in tw(3): a(x)
    for x in st2(2): a(x)
    for x in pk(0): a(x)
    for x in st2(3): a(x)
    for x in pk(1): a(x)
    a('s_nop 1')
    for x in pk(2): a(x)
    a('s_nop 1')
    for x in pk(3): a(x)
    for r in range(4):
        a(f'ds_write_b128 v39, {vr(P+4*r,4)} offset:{1024*r}')
    a('s_waitcnt lgkmcnt(0)')
    ts(a,3)
    a('s_barrier')
    for u in range(4):
        a(f'ds_read_b128 {vr(A3+4*u,4)}, v6 offset:{1024*u}')
    if OPT.get('ws'):
        a('s_cmp_lg_u32 s23, 0\ns_cbranch_scc1 L_noif\nv_mov_b32 v18, 0\nbuffer_load_dword v19, v18, s[16:19], 0 offen sc1')
        a.lab('L_noif')
    for u in range(4):
        a(f's_waitcnt lgkmcnt({3-u})'); a(mfma(D3+4*u,A3+4*u,F3))
    a('s_nop 4')
    for p in range(2):
        if p==1: a('s_nop 1')
        t0=D3+8*p; t1=t0+4; o=O+4*p
        a(f"""v_cvt_pk_bf16_f32 v{o}, v{t0}, v{t0+1}
        v_cvt_pk_bf16_f32 v{o+1}, v{t0+2}, v{t0+3}
        v_cvt_pk_bf16_f32 v{o+2}, v{t1}, v{t1+1}
        v_cvt_pk_bf16_f32 v{o+3}, v{t1+2}, v{t1+3}
        s_nop 1
        v_permlane16_swap_b32 v{o}, v{o+2}
        v_permlane16_swap_b32 v{o+1}, v{o+3}
        s_nop 1
        buffer_store_dwordx4 {vr(o,4)}, v7, s[12:15], s{39 if (p==0 or OPT.get('tshape',0)!=2) else 40} offen offset:{[128,64,0][OPT.get('tshape',0)]*p} sc1""")
    ts(a,4)
    if OPT.get('prio'): a('s_setprio 0')
    if OPT.get('xskip'): a('s_cmp_ge_u32 s2, 256\ns_cbranch_scc1 L_drain')
    a("""s_and_b32 s20, s2, 7
    s_bfe_u32 s21, s2, 0x10007
    s_bfe_u32 s22, s2, 0x10006
    s_bfe_u32 s24, s2, 0x30003
    s_sub_u32 s25, 16, s20
    s_cmp_eq_u32 s20, 0
    s_cselect_b32 s25, 8, s25
    s_cmp_lg_u32 s22, 0
    s_cselect_b32 s25, s25, s20
    s_sub_u32 s26, 16, s25
    s_and_b32 s26, s26, 15
    s_sub_u32 s27, 7, s24""")
    a("""s_mul_i32 s28, s21, 65
    s_lshl_b32 s29, s23, 4
    s_add_u32 s28, s28, s29
    s_lshl_b32 s28, s28, 14
    s_lshl_b32 s29, s25, 10
    s_lshl_b32 s30, s24, 7
    s_add_u32 s29, s29, s30
    s_add_u32 s29, s29, s28
    s_lshl_b32 s30, s26, 10
    s_add_u32 s30, s30, s28
    s_lshl_b32 s31, s27, 7
    s_add_u32 s31, s31, s30
    v_lshrrev_b32 v3, 3, v2
    v_and_b32 v1, 7, v2
    v_lshlrev_b32 v6, 1, v5
    v_xor_b32 v6, v1, v6
    v_lshlrev_b32 v0, 14, v3
    v_lshl_add_u32 v8, v1, 4, v0
    v_lshlrev_b32 v9, 4, v1
    v_sub_u32 v9, 114, v9
    v_add_u32 v9, v0, v9
    s_cmp_eq_u32 s23, 0
    s_cselect_b32 s32, 0x100000, 0
    v_mov_b32 v10, s32
    v_cmp_gt_u32 vcc, 8, v2
    s_lshl_b32 s33, s23, 11
    s_add_u32 s34, s29, 0x20000
    v_cndmask_b32 v10, 0, v10, vcc
    v_add_u32 v11, v9, v10
    v_add_u32 v12, v0, v10
    s_add_u32 s35, s31, 0x20000""")
    a("""v_lshlrev_b32 v13, 7, v3
    v_lshl_add_u32 v13, v6, 4, v13
    v_add_u32 v13, s33, v13
    v_bfe_u32 v30, v2, 2, 2
    v_and_b32 v31, 3, v2
    v_lshl_add_u32 v32, v5, 2, v30
    v_bfe_u32 v33, v32, 1, 2
    v_lshlrev_b32 v32, 7, v32
    v_lshl_add_u32 v32, v31, 3, v32""")
    for ct in range(4):
        a(f'v_xor_b32 v{26+ct}, {ct}, v33\nv_lshl_add_u32 v{26+ct}, v{26+ct}, 5, v32')
    a("""v_lshlrev_b32 v14, 15, v4
    v_and_b32 v30, 1, v5
    v_lshl_add_u32 v14, v30, 5, v14
    v_lshrrev_b32 v30, 1, v5
    v_lshl_add_u32 v14, v30, 4, v14
    s_lshl_b32 s37, s23, 9
    s_add_u32 s37, s37, s25
    s_lshl_b32 s38, s37, 11
    s_lshl_b32 s39, s21, 10
    s_add_u32 s38, s38, s39
    s_lshl_b32 s39, s24, 7
    s_add_u32 s38, s38, s39""")
    lo,ex=(2,130//NSH)
    a(f"""v_and_b32 v35, {NSH-1}, v2
    v_cmp_gt_u32 vcc, {lo}, v35
    v_mov_b32 v15, {ex}
    s_lshl_b32 s46, s21, 7
    v_lshlrev_b32 v35, 2, v35
    v_addc_co_u32 v15, vcc, 0, v15, vcc
    v_add_u32 v35, s46, v35""")
    if OPT.get('byte'): a('v_mov_b32 v15, 0x01010101')
    if OPT.get('ws'):
        MK=7 if NS==8 else (NS-1)&~8
        a(f"""v_and_b32 v35, {MK}, v2
        v_cmp_eq_u32 vcc, s21, v35
        v_mov_b32 v15, {128//NS}
        v_and_b32 v35, {NS-1}, v2
        s_mul_i32 s46, s21, {NS*ST}
        v_cndmask_b32 v16, 0, {2 if NS==8 else 1}, vcc
        v_add_u32 v15, v15, v16
        s_add_u32 s46, s46, 0x210000
        v_mul_u32_u24 v35, {ST}, v35
        v_add_u32 v35, s46, v35""")
    BC=36; AR=68; ACC=132; T0=172; MI=16; NA=68
    a(f"""v_lshlrev_b32 v30, 4, v4
    v_add_u32 v30, s37, v30
    v_cvt_f32_u32 v30, v30
    v_lshlrev_b32 v31, 2, v5
    v_cvt_f32_u32 v31, v31
    v_mul_f32 v30, {f2h(1/2048)}, v30
    v_add_f32 v32, {f2h(0.125)}, v30
    s_cmp_lg_u32 s25, 0
    s_cselect_b32 s40, 1, 0
    v_add_u32 v33, s40, v4
    v_and_b32 v33, 1, v33
    v_lshlrev_b32 v33, 31, v33
    v_xor_b32 v33, {f2h(-0.7071067811865476 if OPT.get('rc') else 0.7071067811865476)}, v33
    v_mov_b32 v34, {f2h(0.125)}
    v_cmp_eq_u32 s[42:43], 0, v5""")
    def consts(kt,kks):
        tf=30 if kt==0 else 32
        a(f'v_fma_f32 v{T0}, v31, v{tf}, -v34\nv_fma_f32 v{T0+1}, v31, v{tf}, v34')
        for kk in kks:
            base=T0+(0 if kk<2 else 1)
            tt=T0+2+(kk&1)*16
            for q in range(2):
                for r in range(4):
                    K=32*(kk&1)+16*q+r
                    a(f'v_fmamk_f32 v{tt+4*q+r}, v{tf}, {f2h(K)}, v{base}')
            for k in range(8): a(f'v_cos_f32 v{tt+8+k}, v{tt+k}')
            if kk==2:
                a(f'v_cndmask_b32 v{tt+8}, v{tt+8}, v33, s[42:43]')
            else:
                a('s_nop 0')
            for k in range(4):
                a(f'v_cvt_pk_bf16_f32 v{BC+16*kt+4*kk+k}, v{tt+8+2*k}, v{tt+9+2*k}')
    def rconsts(blocks,hdr):
        R=T0
        CD=[R,R+4]; SD=[R+1,R+5]; NSD=[R+2,R+6]; CD2=[R+3,R+7]; TH=[R+8,R+9]
        for kt in (range(2) if hdr else []):
            tf=30 if kt==0 else 32
            a(f'v_cos_f32 v{CD[kt]}, v{tf}\nv_sin_f32 v{SD[kt]}, v{tf}\nv_fma_f32 v{TH[kt]}, v31, v{tf}, -v34')
        W=R+10
        for kt in (range(2) if hdr else []):
            a(f'v_xor_b32 v{NSD[kt]}, 0x80000000, v{SD[kt]}\nv_add_f32 v{CD2[kt]}, v{CD[kt]}, v{CD[kt]}')
        for b in blocks:
            P_=[W+9*0,W+9*1]
            for kt in range(2):
                tf=30 if kt==0 else 32
                if b==0: a(f'v_mov_b32 v{P_[kt]}, v{TH[kt]}')
                else: a(f'v_fmamk_f32 v{P_[kt]}, v{tf}, {f2h(16*b)}, v{TH[kt]}')
            for kt in range(2):
                p=P_[kt]; a(f'v_cos_f32 v{p+1}, v{p}\nv_sin_f32 v{p+5}, v{p}')
            for kt in range(2):
                p=P_[kt]; a(f'v_mul_f32 v{p+2}, v{p+1}, v{CD[kt]}\nv_mul_f32 v{p+6}, v{p+5}, v{CD[kt]}')
            for kt in range(2):
                p=P_[kt]; a(f'v_fmac_f32 v{p+2}, v{p+5}, v{NSD[kt]}\nv_fmac_f32 v{p+6}, v{p+1}, v{SD[kt]}')
            for kt in range(2):
                p=P_[kt]; a(f'v_fma_f32 v{p+3}, v{CD2[kt]}, v{p+2}, -v{p+1}\nv_fma_f32 v{p+7}, v{CD2[kt]}, v{p+6}, -v{p+5}')
            for kt in range(2):
                p=P_[kt]; a(f'v_fma_f32 v{p+4}, v{CD2[kt]}, v{p+3}, -v{p+2}\nv_fma_f32 v{p+8}, v{CD2[kt]}, v{p+7}, -v{p+6}')
            kk=b>>1; q=b&1
            for kt in range(2):
                p=P_[kt]; d=BC+16*kt+4*kk+2*q
                a(f'v_cvt_pk_bf16_f32 v{d}, v{p+1}, v{p+2}\nv_cvt_pk_bf16_f32 v{d+1}, v{p+3}, v{p+4}')
                if b==0:
                    a(f'v_cndmask_b32 v{p+5}, v{p+5}, v33, s[42:43]')
                d2=d+8
                a(f'v_cvt_pk_bf16_f32 v{d2+1}, -v{p+7}, -v{p+8}')
            for kt in range(2):
                p=P_[kt]; d2=BC+16*kt+4*kk+2*q+8
                a(f'v_cvt_pk_bf16_f32 v{d2}, -v{p+5}, -v{p+6}')
    pre=OPT.get('pre',0)
    groups=[(kt,kk) for kt in range(2) for kk in range(4)]
    mid=OPT.get('mid',4)
    if OPT.get('rc'):
        groups=[]
        nb=OPT.get('nb',4)
        rconsts(range(nb),True)
        srd(a,8,64,65,'0x400000')
    for kt,kk in groups[:pre]: consts(kt,[kk])
    a.lab('L_drain')
    a('s_waitcnt vmcnt(0)')
    ts(a,5)
    a('s_barrier')
    if OPT.get('ws'):
        a("""s_cmp_lg_u32 s23, 0
        s_cbranch_scc1 L_nosig
        s_mov_b32 s47, 0x40000""")
        a.lab('L_ipoll')
        a("""v_cmp_eq_u32 vcc, 0, v19
        s_cbranch_vccz L_iok
        s_sub_u32 s47, s47, 1
        s_cbranch_scc1 L_iok
        v_mov_b32 v16, 0
        buffer_load_dword v19, v16, s[16:19], 0 offen sc1
        s_waitcnt vmcnt(0)
        s_branch L_ipoll""")
        a.lab('L_iok')
        a("""s_mov_b64 exec, 1
        v_mov_b32 v16, s45
        v_mov_b32 v17, 1
        buffer_atomic_add v17, v16, s[12:15], 0 offen
        s_mov_b64 exec, -1""")
        if OPT.get('tsig'): ts(a,6)
    else: a("""s_cmp_lg_u32 s23, 0
    s_cbranch_scc1 L_nosig
    s_mov_b64 exec, 1
    v_mov_b32 v16, s45
    v_mov_b32 v17, 1
    %s
    s_mov_b64 exec, -1"""%('buffer_store_byte v17, v16, s[16:19], 0 offen sc1' if OPT.get('byte') else 'buffer_atomic_add v17, v16, s[16:19], 0 offen'+(' sc0' if OPT.get('atret') else '')))
    if OPT.get('atret'):
        a('s_waitcnt vmcnt(0)'); ts(a,6)
    a.lab('L_nosig')
    a("""s_cmp_ge_u32 s2, 256
    s_cbranch_scc1 L_done""")
    if OPT.get('rc'):
        PD=OPT.get('pd',1)
        PR=[20,21,22]
        rest=list(range(nb,4))
        for k in range(PD):
            a(f"s_cmp_lg_u32 s23, 0\ns_cbranch_scc1 L_np{k}\nbuffer_load_dword v{PR[k]}, v35, s[POLLSRD], 0 offen sc1")
            a.lab(f'L_np{k}')
            if k<PD-1 and rest: rconsts([rest.pop(0)],False)
        if rest: rconsts(rest,False)
        if not OPT.get('tsig'): ts(a,6)
        a("s_cmp_eq_u32 s23, 0\ns_cbranch_scc1 L_pollw")
        if OPT.get('dry'):
            a("s_cmp_lg_u32 s23, %d\ns_cbranch_scc1 L_ready\ns_mov_b64 vcc, -1\ns_branch L_dry"%OPT['dry'])
            a.lab('L_dryret')
        a("s_branch L_ready")
        a.lab('L_pollw')
        a("s_mov_b32 s47, %s"%('0' if OPT.get('nopoll') else '0x40000'))
        a.lab('L_poll')
        for k in range(PD):
            a(f"""s_waitcnt vmcnt({PD-1})
            v_cmp_ne_u32 vcc, v{PR[k]}, v15
            s_cbranch_vccz L_ready
            buffer_load_dword v{PR[k]}, v35, s[POLLSRD], 0 offen sc1""")
        a("""s_sub_u32 s47, s47, 1
        s_cbranch_scc0 L_poll""")
    else:
        a("""s_cmp_lg_u32 s23, 0
        s_cbranch_scc1 L_nopoll0
        buffer_load_dword v18, v35, s[POLLSRD], 0 offen sc1""")
        a.lab('L_nopoll0')
        for kt,kk in groups[pre:mid]: consts(kt,[kk])
        if not OPT.get('atret') and not OPT.get('tsig'): ts(a,6)
        a("""s_cmp_lg_u32 s23, 0
        s_cbranch_scc1 L_ready
        s_mov_b32 s47, %s"""%('0' if OPT.get('nopoll') else '0x40000'))
        a.lab('L_poll')
        a("""s_waitcnt vmcnt(0)
        v_cmp_ne_u32 vcc, v18, v15
        s_cbranch_vccz L_ready
        s_sub_u32 s47, s47, 1
        s_cbranch_scc1 L_ready
        buffer_load_dword v18, v35, s[POLLSRD], 0 offen sc1
        s_branch L_poll""")
    a.lab('L_ready')
    a('s_barrier')
    if OPT.get('prio'): a('s_setprio %d'%OPT['prio'])
    if OPT.get('dry'): a('s_mov_b64 vcc, 0')
    ts(a,7)
    a(f"""buffer_load_dwordx4 {vr(NA,4)}, v8, s[12:15], s29 offen sc1
    buffer_load_dwordx4 {vr(MI,4)}, v11, s[12:15], s31 offen sc1
    buffer_load_dwordx4 {vr(NA+4,4)}, v8, s[12:15], s34 offen sc1
    buffer_load_dwordx4 {vr(MI+4,4)}, v9, s[12:15], s35 offen sc1
    s_cmp_lg_u32 s24, 0
    s_cbranch_scc1 L_p2_nz
    s_add_u32 s36, s30, 0x20000
    buffer_load_ushort v24, v12, s[12:15], s30 offen sc1
    buffer_load_ushort v25, v0, s[12:15], s36 offen sc1""")
    a.lab('L_p2_nz')
    if not OPT.get('rc'): srd(a,8,64,65,'0x400000')
    for kt,kk in groups[mid:]: consts(kt,[kk])
    a('s_waitcnt vmcnt(0)')
    ts(a,8)
    a.lab('L_dry')
    a(f'ds_write_b128 v13, {vr(NA,4)}\nds_write_b128 v13, {vr(NA+4,4)} offset:1024')
    a('s_cmp_lg_u32 s24, 0\ns_cbranch_scc1 L_p2_nofix')
    a(f"""s_mov_b32 s44, 0xffff
    v_cmp_eq_u32 s[48:49], 0, v1
    v_lshlrev_b32 v24, 16, v24
    v_lshlrev_b32 v25, 16, v25
    v_bfi_b32 v24, s44, v{MI+3}, v24
    v_bfi_b32 v25, s44, v{MI+7}, v25
    v_cndmask_b32 v{MI+3}, v{MI+3}, v24, s[48:49]
    v_cndmask_b32 v{MI+7}, v{MI+7}, v25, s[48:49]""")
    a.lab('L_p2_nofix')
    for i in range(2):
        for k in range(4):
            a(f'v_alignbit_b32 v{T0+4*i+k}, v{MI+4*i+3-k}, v{MI+4*i+3-k}, 16')
    a(f'ds_write_b128 v13, {vr(T0,4)} offset:8192\nds_write_b128 v13, {vr(T0+4,4)} offset:9216')
    a('s_waitcnt lgkmcnt(0)')
    if OPT.get('dry'): a('s_cbranch_vccnz L_nob')
    a('s_barrier')
    a.lab('L_nob')
    ts(a,9)
    reads=[(kk,ct,q) for kk in range(4) for ct in range(4) for q in range(2)]
    issued=0
    def issue(upto):
        nonlocal issued
        while issued<min(upto,len(reads)):
            kk,ct,q=reads[issued]
            a(f'ds_read_b64_tr_b16 {vr(AR+16*kk+4*ct+2*q,2)}, v{26+ct} offset:{4096*kk+2048*q}')
            issued+=1
    issue(14)
    for kk in range(4):
        for ct in range(4):
            need=2*(4*kk+ct)+2
            a(f's_waitcnt lgkmcnt({issued-need})')
            for kt in range(2):
                acc=ACC+16*kt+4*ct
                a(mfma(acc,AR+16*kk+4*ct,BC+16*kt+4*kk,None if kk==0 else acc))
            issue(need+14)
    a('s_nop 1')
    for kt in range(2):
        for p in range(2):
            t0=ACC+16*kt+8*p; t1=t0+4
            o=[164,168,172,176][2*kt+p]
            a(f"""v_cvt_pk_bf16_f32 v{o}, v{t0}, v{t0+1}
            v_cvt_pk_bf16_f32 v{o+1}, v{t0+2}, v{t0+3}
            v_cvt_pk_bf16_f32 v{o+2}, v{t1}, v{t1+1}
            v_cvt_pk_bf16_f32 v{o+3}, v{t1+2}, v{t1+3}
            s_nop 1
            v_permlane16_swap_b32 v{o}, v{o+2}
            v_permlane16_swap_b32 v{o+1}, v{o+3}""")
            a(f's_add_u32 s41, s38, {kt*524288}')
            if OPT.get('dry'): a(f's_cbranch_vccnz L_ns{kt}{p}' if (kt,p)!=(1,1) else 's_cbranch_vccnz L_dryret')
            a(f'buffer_store_dwordx4 {vr(o,4)}, v14, s[8:11], s41 offen offset:{64*p}')
            if OPT.get('dry') and (kt,p)!=(1,1): a.lab(f'L_ns{kt}{p}')
    ts(a,10)
    a.lab('L_done')
    tsdump(a)
    a('s_endpgm')
    a.lab('L_idle')
    if OPT.get('ws'):
        a(f"""s_cmp_lg_u32 s2, 258
        s_cbranch_scc1 L_end""")
        ts(a,0)
        a(f"""s_nop 0
        s_load_dwordx4 s[64:67], s[0:1], 88
        v_cmp_gt_u32 vcc, {min(2*NS,64)}, v0
        s_and_b64 exec, exec, vcc
        s_cbranch_execz L_end
        v_mul_u32_u24 v1, {ST}, v0
        v_mov_b32 v2, 0
        v_add_u32 v1, 0x210000, v1
        s_waitcnt lgkmcnt(0)""")
        srd(a,12,66,67,'0x240000')
        srd(a,16,64,65,'256')
        if NS==64: a(f's_mov_b32 s20, {64*ST}\nbuffer_store_dword v2, v1, s[12:15], s20 offen sc1')
        a("""buffer_store_dword v2, v1, s[12:15], 0 offen sc1
        v_mov_b32 v3, 1
        s_mov_b64 exec, 1
        s_waitcnt vmcnt(0)""")
        ts(a,1)
        a('buffer_store_dword v3, v2, s[16:19], 0 offen sc1')
        if INSTR:
            a('s_mov_b32 s68, s66\ns_mov_b32 s69, s67\ns_mov_b32 s23, 0\ns_branch L_done')
    a.lab('L_end')
    a('s_endpgm')
    t=a.txt().replace('s[POLLSRD]','s[12:15]' if OPT.get('ws') else 's[16:19]')
    return head(name)+t+desc(name,216,96)

def build(path):
    ref=open('cdna_kernels/%s.s.ref'%NAME).read()
    hdr=ref.split('; Override')[0]
    s=hdr
    s+="; 2D DFT (real part) of x via point-symmetric (Hartley) folding; DFT constants are generated in-kernel.\n"
    s+="; One launch: stage 1 publishes T (write-through) and signals counters in d_debug; stage 2 waits on them.\n"
    s+="; @launch grid=(272,1,1) block=(256,1,1) lds=49152\n"
    s+='.amdgcn_target "amdgcn-amd-amdhsa--gfx950"\n'
    s+=fused(NAME+'_kernel')
    open(path,'w').write(s)
if __name__=='__main__':
    for x in sys.argv[2:]:
        if x=='instr': INSTR=True
        else:
            k,v=x.split('='); OPT[k]=int(v)
    build(sys.argv[1])
```

```python
import struct, sys
NAME='concat_heads__spectral_fnet__spectral_fnet__prompt'
def f2h(x): return '0x%08x'%struct.unpack('<I',struct.pack('<f',x))[0]
INSTR=False
OPT={}
class A:
    def __init__(s): s.l=[]
    def __call__(s,t):
        for x in t.strip('\n').split('\n'):
            s.l.append('  '+x.strip())
    def lab(s,n): s.l.append(n+':')
    def txt(s): return '\n'.join(s.l)+'\n'
def vr(a,n): return 'v[%d:%d]'%(a,a+n-1)
def mfma(d,a,b,c=None):
    return 'v_mfma_f32_16x16x32_bf16 %s, %s, %s, %s'%(vr(d,4),vr(a,4),vr(b,4),'0' if c is None else vr(c,4))
def srd(a,d,lo,hi,n):
    a(f's_mov_b32 s{d}, s{lo}\ns_and_b32 s{d+1}, s{hi}, 0xffff\ns_mov_b32 s{d+2}, {n}\ns_mov_b32 s{d+3}, 0x20000')
def desc(name,vg,sg):
    return f""".section .rodata,"a"
.p2align 6
.amdhsa_kernel {name}
  .amdhsa_next_free_vgpr {vg}
  .amdhsa_next_free_sgpr {sg}
  .amdhsa_accum_offset {(vg+3)//4*4}
  .amdhsa_group_segment_fixed_size 0
  .amdhsa_kernarg_size 104
  .amdhsa_user_sgpr_count 2
  .amdhsa_user_sgpr_kernarg_segment_ptr 1
  .amdhsa_system_sgpr_workgroup_id_x 1
.end_amdhsa_kernel
"""
def head(name):
    return f""".text
.globl {name}
.p2align 8
.type {name},@function
{name}:
"""
TS0=72
NTS=12
def ts(a,k):
    if INSTR: a(f's_memrealtime s[{TS0+2*k}:{TS0+1+2*k}]\ns_waitcnt lgkmcnt(0)')
def tsdump(a):
    if not INSTR: return
    a('s_waitcnt vmcnt(0)')
    ts(a,NTS-1)
    a('s_mov_b32 s8, s68\ns_and_b32 s9, s69, 0xffff\ns_mov_b32 s10, 0x2000000\ns_mov_b32 s11, 0x20000')
    a(f's_lshl_b32 s48, s2, 8\ns_lshl_b32 s49, s23, 6\ns_add_u32 s48, s48, s49\ns_add_u32 s48, s48, {16<<20}')
    a('s_mov_b64 exec, 1\nv_mov_b32 v1, 0')
    for k in range(NTS):
        a(f'v_mov_b32 v2, s{TS0+2*k}\nbuffer_store_dword v2, v1, s[8:11], s48 offen offset:{4*k}')

def fused(name):
    NSH=OPT.get('nsh',16)
    a=A()
    a("""s_lshr_b32 s20, s2, 4
    s_lshl_b32 s20, s20, 3
    s_and_b32 s21, s2, 7
    s_add_u32 s20, s20, s21
    s_cmp_ge_u32 s20, 130
    s_cbranch_scc1 L_idle""")
    if OPT.get('prio'): a('s_setprio %d'%OPT['prio'])
    if INSTR: a(f's_memrealtime s[{TS0}:{TS0+1}]')
    TAB=OPT.get('tab')
    a("""s_load_dwordx2 s[4:5], s[0:1], 0
    s_load_dwordx2 s[6:7], s[0:1], 40""")
    if TAB: a("""s_load_dwordx4 s[52:55], s[0:1], 24
    s_load_dwordx4 s[56:59], s[0:1], 64""")
    a("""s_load_dwordx4 s[64:67], s[0:1], 80
    s_load_dwordx2 s[68:69], s[0:1], 96
    v_lshrrev_b32 v1, 6, v0
    v_and_b32 v2, 63, v0
    s_bfe_u32 s22, s2, 0x10003
    v_readfirstlane_b32 s23, v1
    s_cmp_ge_u32 s20, 65
    s_cselect_b32 s24, 65, 0
    s_sub_u32 s25, s20, s24""")
    a("""s_cmp_eq_u32 s25, 64
    s_cselect_b32 s27, 0xffffffc0, s25
    s_cselect_b32 s28, %s, 0
    v_lshlrev_b32 v3, 4, v2
    s_lshl_b32 s29, s23, 9
    s_add_u32 s30, s29, s25
    s_lshl_b32 s30, s30, 10
    s_sub_u32 s31, s29, s27
    s_lshl_b32 s32, s23, 13"""%f2h(1/32))
    C1,S1,NS1,TC,TS,ST2,F3=8,12,16,20,24,28,34
    if TAB:
        a("""v_and_b32 v4, 15, v2
        v_lshrrev_b32 v5, 4, v2
        s_lshl_b32 s35, s22, 18
        v_lshlrev_b32 v43, 3, v5
        s_lshl_b32 s36, s22, 14
        v_lshl_add_u32 v40, v4, 14, v43
        v_lshl_add_u32 v41, v4, 10, v43
        v_lshl_add_u32 v42, v4, 15, v43""")
    a("""s_cmp_lg_u32 s24, 0
    s_waitcnt lgkmcnt(0)
    s_cselect_b32 s4, s6, s4
    s_cselect_b32 s5, s7, s5""")
    if OPT.get('xt'): ts(a,1)
    if TAB:
        a("""s_cselect_b32 s52, s56, s52
        s_cselect_b32 s53, s57, s53
        s_cselect_b32 s54, s58, s54
        s_cselect_b32 s55, s59, s55""")
        srd(a,56,52,53,'0x80000')
        srd(a,60,54,55,'0x80000')
        a(f"""buffer_load_dwordx2 {vr(C1,2)}, v40, s[56:59], s35 offen
        buffer_load_dwordx2 {vr(NS1,2)}, v40, s[60:63], s35 offen
        buffer_load_dwordx2 {vr(C1+2,2)}, v40, s[56:59], s35 offen offset:32
        buffer_load_dwordx2 {vr(NS1+2,2)}, v40, s[60:63], s35 offen offset:32""")
    srd(a,8,4,5,'0x200000')
    for i in range(4):
        a(f"""s_add_u32 m0, s32, {2048*i}
        s_add_u32 s33, s30, {i*0x20000}
        s_add_u32 s34, s31, {128*i}
        buffer_load_dwordx4 v3, s[8:11], s33 offen lds
        s_and_b32 s34, s34, 2047
        s_add_u32 m0, s32, {2048*i+1024}
        s_lshl_b32 s34, s34, 10
        buffer_load_dwordx4 v3, s[8:11], s34 offen lds""")
    if TAB:
        a(f"""buffer_load_dwordx2 v[208:209], v41, s[56:59], s36 offen
        buffer_load_dwordx2 v[210:211], v41, s[60:63], s36 offen
        buffer_load_dwordx2 {vr(ST2+2,2)}, v42, s[56:59], 0 offen
        buffer_load_dwordx2 {vr(ST2,2)}, v42, s[60:63], 0 offen""")
    if OPT.get('xt'):
        ts(a,2); a('s_waitcnt vmcnt(4)'); ts(a,3); a('s_waitcnt vmcnt(0)'); ts(a,4); a('s_branch L_done')
    if OPT.get('off'):
        assert not INSTR
        a(f's_add_u32 s68, s68, {OPT["off"]}\ns_addc_u32 s69, s69, 0')
    srd(a,12,68,69,'0x240000')
    if OPT.get('sen'):
        a("""v_and_b32 v4, 15, v2
        v_lshrrev_b32 v5, 4, v2
        v_mov_b32 v200, -1
        v_mov_b32 v201, -1
        v_and_b32 v40, 1, v5
        v_lshrrev_b32 v41, 1, v5
        v_lshlrev_b32 v215, 10, v4
        v_lshl_add_u32 v215, v40, 6, v215
        v_lshl_add_u32 v215, v41, 4, v215
        s_lshl_b32 s37, s23, 8
        s_lshl_b32 s38, s22, 5
        s_add_u32 s37, s37, s38
        v_add_u32 v215, s37, v215
        s_lshl_b32 s39, s20, 14
        v_mov_b32 v202, -1
        v_mov_b32 v203, -1
        buffer_store_dwordx4 v[200:203], v215, s[12:15], s39 offen sc1
        buffer_store_dwordx4 v[200:203], v215, s[12:15], s39 offen offset:128 sc1""")
    srd(a,16,66,67,'256')
    if OPT.get('ws'):
        ST=OPT.get('st',256); NS=OPT['ws']
        a(f"""s_and_b32 s45, s2, {NS-1}
        s_cmp_lg_u32 s24, 0
        s_cselect_b32 s46, {NS}, 0
        s_add_u32 s45, s45, s46
        s_mul_i32 s45, s45, {ST}
        s_add_u32 s45, s45, 0x210000""")
    if not OPT.get('ws'): a(f"""s_lshl_b32 s45, s25, 1
    s_add_u32 s45, s45, s22
    s_and_b32 s45, s45, {NSH-1}
    s_lshl_b32 s45, s45, 2
    s_cmp_lg_u32 s24, 0
    s_cselect_b32 s46, 128, 0
    s_add_u32 s45, s45, s46""")
    if OPT.get('byte'):
        a(f"""s_lshl_b32 s45, s25, 1
        s_add_u32 s45, s45, s22
        s_and_b32 s45, s45, 127
        s_add_u32 s45, s45, s46""")
    if TAB:
        t=72
        a(f"""v_cvt_f32_u32 v{t}, v4
        v_lshlrev_b32 v{t+1}, 2, v5
        v_cvt_f32_u32 v{t+1}, v{t+1}
        v_mul_f32 v{t+2}, {f2h(1/16)}, v{t}
        v_mul_f32 v{t+3}, v{t+1}, v{t+2}
        v_fma_f32 v{t+3}, v{t}, s28, v{t+3}
        v_add_f32 v{t+4}, {f2h(0.125)}, v{t+3}
        v_add_f32 v{t+5}, {f2h(-0.125)}, v{t+3}""")
        for r in range(4):
            if r==0: continue
            a(f'v_fmamk_f32 v{t+6+2*r}, v{t+2}, {f2h(r)}, v{t+4}\nv_fmamk_f32 v{t+7+2*r}, v{t+2}, {f2h(r)}, v{t+5}')
        a(f'v_cos_f32 v{t+16}, v{t+4}\nv_cos_f32 v{t+17}, v{t+5}')
        for r in range(1,4):
            a(f'v_cos_f32 v{t+16+2*r}, v{t+6+2*r}\nv_cos_f32 v{t+17+2*r}, v{t+7+2*r}')
        a('s_nop 0')
        for r in range(4):
            a(f'v_cvt_pk_bf16_f32 v{F3+r}, v{t+16+2*r}, v{t+17+2*r}')
    else:
        a(f"""v_and_b32 v4, 15, v2
        v_lshrrev_b32 v5, 4, v2
        s_lshl_b32 s35, s22, 4
        v_add_u32 v6, s35, v4
        v_cvt_f32_u32 v6, v6
        v_lshlrev_b32 v7, 2, v5
        v_cvt_f32_u32 v7, v7
        v_cvt_f32_u32 v38, v4
        v_mul_f32 v39, {f2h(1/32)}, v6
        v_mul_f32 v6, {f2h(1/512)}, v6
        v_mul_f32 v40, v7, v39
        v_mul_f32 v41, v7, v6
        v_mul_f32 v42, {f2h(1/16)}, v38
        v_mul_f32 v43, v7, v42
        v_fma_f32 v44, v38, s28, v43""")
        t=48
        for q in range(2):
            for r in range(4):
                a(f'v_fmamk_f32 v{t+4*q+r}, v39, {f2h(16*q+r)}, v40')
        for k in range(8):
            a(f'v_cos_f32 v{t+8+k}, v{t+k}\nv_sin_f32 v{t+16+k}, v{t+k}')
        for r in range(4):
            a(f'v_fmamk_f32 v{t+24+r}, v6, {f2h(r)}, v41')
        for k in range(4):
            a(f'v_cvt_pk_bf16_f32 v{C1+k}, v{t+8+2*k}, v{t+9+2*k}\nv_cvt_pk_bf16_f32 v{S1+k}, v{t+16+2*k}, v{t+17+2*k}')
        for r in range(4):
            a(f'v_cos_f32 v{TC+r}, v{t+24+r}\nv_sin_f32 v{TS+r}, v{t+24+r}')
        for k in range(4):
            a(f'v_xor_b32 v{NS1+k}, 0x80008000, v{S1+k}')
        for r in range(4):
            a(f'v_fmamk_f32 v{t+r}, v42, {f2h(r)}, v43\nv_fmamk_f32 v{t+4+r}, v42, {f2h(r)}, v44')
        for r in range(4):
            a(f'v_cos_f32 v{t+8+r}, v{t+r}\nv_sin_f32 v{t+12+r}, v{t+r}')
        for r in range(4):
            a(f'v_add_f32 v{t+16+r}, {f2h(0.125)}, v{t+4+r}\nv_add_f32 v{t+20+r}, {f2h(-0.125)}, v{t+4+r}')
        a(f"""v_cvt_pk_bf16_f32 v{ST2+2}, v{t+8}, v{t+9}
        v_cvt_pk_bf16_f32 v{ST2+3}, v{t+10}, v{t+11}
        v_cvt_pk_bf16_f32 v{ST2+4}, v{t+12}, v{t+13}
        v_cvt_pk_bf16_f32 v{ST2+5}, v{t+14}, v{t+15}""")
        for r in range(4):
            a(f'v_cos_f32 v{t+24+r}, v{t+16+r}\nv_cos_f32 v{t+28+r}, v{t+20+r}')
        a(f'v_xor_b32 v{ST2}, 0x80008000, v{ST2+4}\nv_xor_b32 v{ST2+1}, 0x80008000, v{ST2+5}')
        for r in range(4):
            a(f'v_cvt_pk_bf16_f32 v{F3+r}, v{t+24+r}, v{t+28+r}')
    a(f"""v_lshlrev_b32 v38, 3, v2
    v_add_u32 v38, s32, v38
    v_bfe_u32 v40, v4, 1, 2
    v_xor_b32 v41, s23, v40
    v_xor_b32 v42, v5, v40
    v_lshlrev_b32 v43, 6, v4
    v_lshl_add_u32 v41, v41, 4, v43
    v_lshl_add_u32 v42, v42, 4, v43
    v_lshlrev_b32 v39, 12, v5
    v_add_u32 v39, v39, v41
    v_add_u32 v39, 0x8000, v39
    s_lshl_b32 s36, s23, 12
    s_add_u32 s36, s36, 0x8000
    v_add_u32 v6, s36, v42""")
    if not OPT.get('sen'): a("""v_and_b32 v40, 1, v5
    v_lshrrev_b32 v41, 1, v5
    v_lshlrev_b32 v7, 10, v4
    v_lshl_add_u32 v7, v40, 6, v7
    v_lshl_add_u32 v7, v41, 4, v7
    s_lshl_b32 s37, s23, 8
    s_lshl_b32 s38, s22, 5
    s_add_u32 s37, s37, s38
    v_add_u32 v7, s37, v7
    s_lshl_b32 s39, s20, 14""")
    if OPT.get('sen'):
        NS=OPT['ws']; ST=OPT.get('st',256); MK=7 if NS==8 else (NS-1)&~8
        a(f"""s_bfe_u32 s21, s2, 0x10007
        v_and_b32 v208, {MK}, v2
        v_cmp_eq_u32 vcc, s21, v208
        v_mov_b32 v209, {128//NS}
        v_and_b32 v208, {min(NS,64)-1}, v2
        s_mul_i32 s46, s21, {NS*ST}
        v_cndmask_b32 v210, 0, {2 if NS==8 else 1}, vcc
        v_add_u32 v209, v209, v210
        s_add_u32 s46, s46, 0x210000
        v_mul_u32_u24 v208, {ST}, v208
        v_add_u32 v208, s46, v208
        v_mov_b32 v212, s45
        v_mov_b32 v213, 1
        v_mov_b32 v214, 0""")
    if OPT.get('tshape')==1:
        a("""v_lshlrev_b32 v7, 10, v4
        v_lshl_add_u32 v7, v40, 5, v7
        v_lshl_add_u32 v7, v41, 4, v7
        s_lshl_b32 s37, s23, 7
        s_lshl_b32 s38, s22, 9
        s_add_u32 s37, s37, s38
        v_add_u32 v7, s37, v7""")
    if OPT.get('tshape')==2:
        a("""v_and_b32 v42, 7, v4
        v_lshrrev_b32 v43, 3, v4
        v_lshlrev_b32 v7, 10, v42
        v_lshl_add_u32 v7, v43, 6, v7
        v_lshl_add_u32 v7, v40, 5, v7
        v_lshl_add_u32 v7, v41, 4, v7
        s_lshl_b32 s37, s23, 7
        s_lshl_b32 s38, s22, 9
        s_add_u32 s37, s37, s38
        v_add_u32 v7, s37, v7
        s_add_u32 s40, s39, 8192""")
    XA=40; D1=72; B2=104; D2=120; P=152; A3=168; D3=184; O=200
    def rd(i):
        for ab in range(2):
            for q in range(2):
                a(f'ds_read_b64_tr_b16 {vr(XA+8*i+4*ab+2*q,2)}, v38 offset:{(2*i+ab)*1024+512*q}')
    ts(a,1)
    if TAB:
        a('s_waitcnt vmcnt(8)'); rd(0); rd(1)
        for k in range(4): a(f'v_xor_b32 v{S1+k}, 0x80008000, v{NS1+k}')
        a('s_waitcnt vmcnt(4)'); rd(2); rd(3)
    else:
        SN=2 if OPT.get('sen') else 0
        a(f's_waitcnt vmcnt({4+SN})'); rd(0); rd(1)
        a(f's_waitcnt vmcnt({SN})'); rd(2); rd(3)
        if SN:
            a('s_cmp_lg_u32 s23, 0\ns_cbranch_scc1 L_nif\nbuffer_load_dword v211, v214, s[16:19], 0 offen sc1')
            a.lab('L_nif')
    if INSTR: a('s_waitcnt lgkmcnt(0)')
    ts(a,2)
    def st1(i):
        xa=XA+8*i; xb=xa+4; re=D1+8*i; im=re+4
        a(mfma(re,xa,C1)); a(mfma(im,xa,NS1)); a(mfma(re,xb,S1,re)); a(mfma(im,xb,C1,im))
    def tw(i):
        re=D1+8*i; im=re+4; o=[]
        tmp=XA+8*i
        for r in range(4):
            o.append(f'v_mul_f32 v{tmp+r}, v{re+r}, v{TC+r}')
            o.append(f'v_mul_f32 v{tmp+4+r}, v{im+r}, v{TC+r}')
        for r in range(4):
            if TAB:
                o.append(f'v_fma_f32 v{tmp+r}, -v{im+r}, v{TS+r}, v{tmp+r}')
                o.append(f'v_fmac_f32 v{tmp+4+r}, v{re+r}, v{TS+r}')
            else:
                o.append(f'v_fmac_f32 v{tmp+r}, v{im+r}, v{TS+r}')
                o.append(f'v_fma_f32 v{tmp+4+r}, -v{re+r}, v{TS+r}, v{tmp+4+r}')
        b=B2+4*i
        o+= [f'v_cvt_pk_bf16_f32 v{b}, v{tmp}, v{tmp+1}',f'v_cvt_pk_bf16_f32 v{b+1}, v{tmp+2}, v{tmp+3}',
             f'v_cvt_pk_bf16_f32 v{b+2}, v{tmp+4}, v{tmp+5}',f'v_cvt_pk_bf16_f32 v{b+3}, v{tmp+6}, v{tmp+7}']
        return o
    def st2(i):
        b=B2+4*i; re=D2+8*i; im=re+4
        return [mfma(re,ST2+2,b), mfma(im,ST2,b)]
    def pk(i):
        re=D2+8*i; im=re+4
        return [f'v_cvt_pk_bf16_f32 v{P+4*r+i}, v{re+r}, v{im+r}' for r in range(4)]
    a('s_waitcnt lgkmcnt(8)'); st1(0); st1(1)
    a('s_waitcnt lgkmcnt(0)'); st1(2); st1(3)
    if TAB:
        a(f"""s_waitcnt vmcnt(0)
        v_lshlrev_b32 v{TC}, 16, v0R
        v_and_b32 v{TC+1}, 0xffff0000, v0R
        v_lshlrev_b32 v{TC+2}, 16, v1R
        v_and_b32 v{TC+3}, 0xffff0000, v1R
        v_lshlrev_b32 v{TS}, 16, v2R
        v_and_b32 v{TS+1}, 0xffff0000, v2R
        v_lshlrev_b32 v{TS+2}, 16, v3R
        v_and_b32 v{TS+3}, 0xffff0000, v3R
        v_xor_b32 v{ST2+4}, 0x80008000, v{ST2}
        v_xor_b32 v{ST2+5}, 0x80008000, v{ST2+1}""".replace('v0R','v208').replace('v1R','v209').replace('v2R','v210').replace('v3R','v211'))
    for x in tw(0): a(x)
    for x in tw(1): a(x)
    for x in st2(0): a(x)
    for x in tw(2): a(x)
    for x in st2(1): a(x)
    for x in tw(3): a(x)
    for x in st2(2): a(x)
    for x in pk(0): a(x)
    for x in st2(3): a(x)
    for x in pk(1): a(x)
    a('s_nop 1')
    for x in pk(2): a(x)
    a('s_nop 1')
    for x in pk(3): a(x)
    for r in range(4):
        a(f'ds_write_b128 v39, {vr(P+4*r,4)} offset:{1024*r}')
    a('s_waitcnt vmcnt(0) lgkmcnt(0)' if OPT.get('sen') else 's_waitcnt lgkmcnt(0)')
    ts(a,3)
    a('s_barrier')
    for u in range(4):
        a(f'ds_read_b128 {vr(A3+4*u,4)}, v6 offset:{1024*u}')
    if OPT.get('sen'):
        a("""s_cmp_lg_u32 s23, 0
        s_cbranch_scc1 L_noif
        s_mov_b32 s47, 0x40000""")
        a.lab('L_ipoll')
        a("""v_cmp_eq_u32 vcc, 0, v211
        s_cbranch_vccz L_iok
        s_sub_u32 s47, s47, 1
        s_cbranch_scc1 L_iok
        buffer_load_dword v211, v214, s[16:19], 0 offen sc1
        s_waitcnt vmcnt(0)
        s_branch L_ipoll""")
        a.lab('L_iok')
        a("""s_mov_b64 exec, 1
        buffer_atomic_add v213, v212, s[12:15], 0 offen
        s_mov_b64 exec, -1
        buffer_load_dword v210, v208, s[12:15], 0 offen sc1""")
        a.lab('L_noif')
    elif OPT.get('ws'):
        a('s_cmp_lg_u32 s23, 0\ns_cbranch_scc1 L_noif\nv_mov_b32 v18, 0\nbuffer_load_dword v19, v18, s[16:19], 0 offen sc1')
        a.lab('L_noif')
    for u in range(4):
        a(f's_waitcnt lgkmcnt({3-u})'); a(mfma(D3+4*u,A3+4*u,F3))
    a('s_nop 4')
    for p in range(2):
        if p==1: a('s_nop 1')
        t0=D3+8*p; t1=t0+4; o=O+4*p
        a(f"""v_cvt_pk_bf16_f32 v{o}, v{t0}, v{t0+1}
        v_cvt_pk_bf16_f32 v{o+1}, v{t0+2}, v{t0+3}
        v_cvt_pk_bf16_f32 v{o+2}, v{t1}, v{t1+1}
        v_cvt_pk_bf16_f32 v{o+3}, v{t1+2}, v{t1+3}
        s_nop 1
        v_permlane16_swap_b32 v{o}, v{o+2}
        v_permlane16_swap_b32 v{o+1}, v{o+3}
        s_nop 1
        buffer_store_dwordx4 {vr(o,4)}, v{215 if OPT.get('sen') else 7}, s[12:15], s{39 if (p==0 or OPT.get('tshape',0)!=2) else 40} offen offset:{[128,64,0][OPT.get('tshape',0)]*p} sc1""")
    ts(a,4)
    if OPT.get('prio') and not OPT.get('sen'): a('s_setprio 0')
    if OPT.get('sen'): a('s_cmp_ge_u32 s2, 256\ns_cbranch_scc1 L_done')
    elif OPT.get('xskip'): a('s_cmp_ge_u32 s2, 256\ns_cbranch_scc1 L_drain')
    a("""s_and_b32 s20, s2, 7
    s_bfe_u32 s21, s2, 0x10007
    s_bfe_u32 s22, s2, 0x10006
    s_bfe_u32 s24, s2, 0x30003
    s_sub_u32 s25, 16, s20
    s_cmp_eq_u32 s20, 0
    s_cselect_b32 s25, 8, s25
    s_cmp_lg_u32 s22, 0
    s_cselect_b32 s25, s25, s20
    s_sub_u32 s26, 16, s25
    s_and_b32 s26, s26, 15
    s_sub_u32 s27, 7, s24""")
    a("""s_mul_i32 s28, s21, 65
    s_lshl_b32 s29, s23, 4
    s_add_u32 s28, s28, s29
    s_lshl_b32 s28, s28, 14
    s_lshl_b32 s29, s25, 10
    s_lshl_b32 s30, s24, 7
    s_add_u32 s29, s29, s30
    s_add_u32 s29, s29, s28
    s_lshl_b32 s30, s26, 10
    s_add_u32 s30, s30, s28
    s_lshl_b32 s31, s27, 7
    s_add_u32 s31, s31, s30
    v_lshrrev_b32 v3, 3, v2
    v_and_b32 v1, 7, v2
    v_lshlrev_b32 v6, 1, v5
    v_xor_b32 v6, v1, v6
    v_lshlrev_b32 v0, 14, v3
    v_lshl_add_u32 v8, v1, 4, v0
    v_lshlrev_b32 v9, 4, v1
    v_sub_u32 v9, 114, v9
    v_add_u32 v9, v0, v9
    s_cmp_eq_u32 s23, 0
    s_cselect_b32 s32, 0x100000, 0
    v_mov_b32 v10, s32
    v_cmp_gt_u32 vcc, 8, v2
    s_lshl_b32 s33, s23, 11
    s_add_u32 s34, s29, 0x20000
    v_cndmask_b32 v10, 0, v10, vcc
    v_add_u32 v11, v9, v10
    v_add_u32 v12, v0, v10
    s_add_u32 s35, s31, 0x20000""")
    a("""v_lshlrev_b32 v13, 7, v3
    v_lshl_add_u32 v13, v6, 4, v13
    v_add_u32 v13, s33, v13
    v_bfe_u32 v30, v2, 2, 2
    v_and_b32 v31, 3, v2
    v_lshl_add_u32 v32, v5, 2, v30
    v_bfe_u32 v33, v32, 1, 2
    v_lshlrev_b32 v32, 7, v32
    v_lshl_add_u32 v32, v31, 3, v32""")
    for ct in range(4):
        a(f'v_xor_b32 v{26+ct}, {ct}, v33\nv_lshl_add_u32 v{26+ct}, v{26+ct}, 5, v32')
    a("""v_lshlrev_b32 v14, 15, v4
    v_and_b32 v30, 1, v5
    v_lshl_add_u32 v14, v30, 5, v14
    v_lshrrev_b32 v30, 1, v5
    v_lshl_add_u32 v14, v30, 4, v14
    s_lshl_b32 s37, s23, 9
    s_add_u32 s37, s37, s25
    s_lshl_b32 s38, s37, 11
    s_lshl_b32 s39, s21, 10
    s_add_u32 s38, s38, s39
    s_lshl_b32 s39, s24, 7
    s_add_u32 s38, s38, s39""")
    lo,ex=(2,130//NSH)
    a(f"""v_and_b32 v35, {NSH-1}, v2
    v_cmp_gt_u32 vcc, {lo}, v35
    v_mov_b32 v15, {ex}
    s_lshl_b32 s46, s21, 7
    v_lshlrev_b32 v35, 2, v35
    v_addc_co_u32 v15, vcc, 0, v15, vcc
    v_add_u32 v35, s46, v35""")
    if OPT.get('byte'): a('v_mov_b32 v15, 0x01010101')
    if OPT.get('ws'):
        MK=7 if NS==8 else (NS-1)&~8
        a(f"""v_and_b32 v35, {MK}, v2
        v_cmp_eq_u32 vcc, s21, v35
        v_mov_b32 v15, {128//NS}
        v_and_b32 v35, {min(NS,64)-1}, v2
        s_mul_i32 s46, s21, {NS*ST}
        v_cndmask_b32 v16, 0, {2 if NS==8 else 1}, vcc
        v_add_u32 v15, v15, v16
        s_add_u32 s46, s46, 0x210000
        v_mul_u32_u24 v35, {ST}, v35
        v_add_u32 v35, s46, v35""")
    BC=36; AR=68; ACC=132; T0=172; MI=16; NA=68
    a(f"""v_lshlrev_b32 v30, 4, v4
    v_add_u32 v30, s37, v30
    v_cvt_f32_u32 v30, v30
    v_lshlrev_b32 v31, 2, v5
    v_cvt_f32_u32 v31, v31
    v_mul_f32 v30, {f2h(1/2048)}, v30
    v_add_f32 v32, {f2h(0.125)}, v30
    s_cmp_lg_u32 s25, 0
    s_cselect_b32 s40, 1, 0
    v_add_u32 v33, s40, v4
    v_and_b32 v33, 1, v33
    v_lshlrev_b32 v33, 31, v33
    v_xor_b32 v33, {f2h(-0.7071067811865476 if OPT.get('rc') else 0.7071067811865476)}, v33
    v_mov_b32 v34, {f2h(0.125)}
    v_cmp_eq_u32 s[42:43], 0, v5""")
    def consts(kt,kks):
        tf=30 if kt==0 else 32
        a(f'v_fma_f32 v{T0}, v31, v{tf}, -v34\nv_fma_f32 v{T0+1}, v31, v{tf}, v34')
        for kk in kks:
            base=T0+(0 if kk<2 else 1)
            tt=T0+2+(kk&1)*16
            for q in range(2):
                for r in range(4):
                    K=32*(kk&1)+16*q+r
                    a(f'v_fmamk_f32 v{tt+4*q+r}, v{tf}, {f2h(K)}, v{base}')
            for k in range(8): a(f'v_cos_f32 v{tt+8+k}, v{tt+k}')
            if kk==2:
                a(f'v_cndmask_b32 v{tt+8}, v{tt+8}, v33, s[42:43]')
            else:
                a('s_nop 0')
            for k in range(4):
                a(f'v_cvt_pk_bf16_f32 v{BC+16*kt+4*kk+k}, v{tt+8+2*k}, v{tt+9+2*k}')
    def rconsts(blocks,hdr):
        R=T0
        CD=[R,R+4]; SD=[R+1,R+5]; NSD=[R+2,R+6]; CD2=[R+3,R+7]; TH=[R+8,R+9]
        for kt in (range(2) if hdr else []):
            tf=30 if kt==0 else 32
            a(f'v_cos_f32 v{CD[kt]}, v{tf}\nv_sin_f32 v{SD[kt]}, v{tf}\nv_fma_f32 v{TH[kt]}, v31, v{tf}, -v34')
        W=R+10
        for kt in (range(2) if hdr else []):
            a(f'v_xor_b32 v{NSD[kt]}, 0x80000000, v{SD[kt]}\nv_add_f32 v{CD2[kt]}, v{CD[kt]}, v{CD[kt]}')
        for b in blocks:
            P_=[W+9*0,W+9*1]
            for kt in range(2):
                tf=30 if kt==0 else 32
                if b==0: a(f'v_mov_b32 v{P_[kt]}, v{TH[kt]}')
                else: a(f'v_fmamk_f32 v{P_[kt]}, v{tf}, {f2h(16*b)}, v{TH[kt]}')
            for kt in range(2):
                p=P_[kt]; a(f'v_cos_f32 v{p+1}, v{p}\nv_sin_f32 v{p+5}, v{p}')
            for kt in range(2):
                p=P_[kt]; a(f'v_mul_f32 v{p+2}, v{p+1}, v{CD[kt]}\nv_mul_f32 v{p+6}, v{p+5}, v{CD[kt]}')
            for kt in range(2):
                p=P_[kt]; a(f'v_fmac_f32 v{p+2}, v{p+5}, v{NSD[kt]}\nv_fmac_f32 v{p+6}, v{p+1}, v{SD[kt]}')
            for kt in range(2):
                p=P_[kt]; a(f'v_fma_f32 v{p+3}, v{CD2[kt]}, v{p+2}, -v{p+1}\nv_fma_f32 v{p+7}, v{CD2[kt]}, v{p+6}, -v{p+5}')
            for kt in range(2):
                p=P_[kt]; a(f'v_fma_f32 v{p+4}, v{CD2[kt]}, v{p+3}, -v{p+2}\nv_fma_f32 v{p+8}, v{CD2[kt]}, v{p+7}, -v{p+6}')
            kk=b>>1; q=b&1
            for kt in range(2):
                p=P_[kt]; d=BC+16*kt+4*kk+2*q
                a(f'v_cvt_pk_bf16_f32 v{d}, v{p+1}, v{p+2}\nv_cvt_pk_bf16_f32 v{d+1}, v{p+3}, v{p+4}')
                if b==0:
                    a(f'v_cndmask_b32 v{p+5}, v{p+5}, v33, s[42:43]')
                d2=d+8
                a(f'v_cvt_pk_bf16_f32 v{d2+1}, -v{p+7}, -v{p+8}')
            for kt in range(2):
                p=P_[kt]; d2=BC+16*kt+4*kk+2*q+8
                a(f'v_cvt_pk_bf16_f32 v{d2}, -v{p+5}, -v{p+6}')
    pre=OPT.get('pre',0)
    groups=[(kt,kk) for kt in range(2) for kk in range(4)]
    mid=OPT.get('mid',4)
    if OPT.get('rc'):
        groups=[]
        nb=OPT.get('nb',4)
        rconsts(range(nb),True)
        srd(a,8,64,65,'0x400000')
    for kt,kk in groups[:pre]: consts(kt,[kk])
    if OPT.get('sen'):
        ts(a,5)
        a("""s_cmp_lg_u32 s23, 0
        s_cbranch_scc1 L_ready
        s_mov_b32 s47, 0x40000
        s_waitcnt vmcnt(2)
        s_branch L_pchk""")
        a.lab('L_poll')
        a("""s_sub_u32 s47, s47, 1
        s_cbranch_scc1 L_ready
        buffer_load_dword v210, v208, s[12:15], 0 offen sc1
        s_waitcnt vmcnt(0)""")
        a.lab('L_pchk')
        a("""v_cmp_ne_u32 vcc, v210, v209
        s_cbranch_vccnz L_poll""")
    else:
        a.lab('L_drain')
        a('s_waitcnt vmcnt(0)')
        ts(a,5)
        a('s_barrier')
        if OPT.get('ws'):
            a("""s_cmp_lg_u32 s23, 0
            s_cbranch_scc1 L_nosig
            s_mov_b32 s47, 0x40000""")
            a.lab('L_ipoll')
            a("""v_cmp_eq_u32 vcc, 0, v19
            s_cbranch_vccz L_iok
            s_sub_u32 s47, s47, 1
            s_cbranch_scc1 L_iok
            v_mov_b32 v16, 0
            buffer_load_dword v19, v16, s[16:19], 0 offen sc1
            s_waitcnt vmcnt(0)
            s_branch L_ipoll""")
            a.lab('L_iok')
            a("""s_mov_b64 exec, 1
            v_mov_b32 v16, s45
            v_mov_b32 v17, 1
            buffer_atomic_add v17, v16, s[12:15], 0 offen
            s_mov_b64 exec, -1""")
            if OPT.get('tsig'): ts(a,6)
        else: a("""s_cmp_lg_u32 s23, 0
        s_cbranch_scc1 L_nosig
        s_mov_b64 exec, 1
        v_mov_b32 v16, s45
        v_mov_b32 v17, 1
        %s
        s_mov_b64 exec, -1"""%('buffer_store_byte v17, v16, s[16:19], 0 offen sc1' if OPT.get('byte') else 'buffer_atomic_add v17, v16, s[16:19], 0 offen'+(' sc0' if OPT.get('atret') else '')))
        if OPT.get('atret'):
            a('s_waitcnt vmcnt(0)'); ts(a,6)
        a.lab('L_nosig')
        a("""s_cmp_ge_u32 s2, 256
        s_cbranch_scc1 L_done""")
        if OPT.get('rc'):
            PD=OPT.get('pd',1)
            PR=[20,21,22]
            rest=list(range(nb,4))
            TWO=(OPT.get('ws')==128)
            if TWO: a(f's_mov_b32 s50, {64*OPT.get("st",256)}')
            for k in range(PD):
                a(f"s_cmp_lg_u32 s23, 0\ns_cbranch_scc1 L_np{k}\nbuffer_load_dword v{PR[k]}, v35, s[POLLSRD], 0 offen sc1")
                if TWO: a('buffer_load_dword v23, v35, s[POLLSRD], s50 offen sc1')
                a.lab(f'L_np{k}')
                if k<PD-1 and rest: rconsts([rest.pop(0)],False)
            if rest: rconsts(rest,False)
            if not OPT.get('tsig'): ts(a,6)
            a("s_cmp_eq_u32 s23, 0\ns_cbranch_scc1 L_pollw")
            if OPT.get('dry'):
                a("s_cmp_lg_u32 s23, %d\ns_cbranch_scc1 L_ready\ns_mov_b64 vcc, -1\ns_branch L_dry"%OPT['dry'])
                a.lab('L_dryret')
            a("s_branch L_ready")
            a.lab('L_pollw')
            a("s_mov_b32 s47, %s"%('0' if OPT.get('nopoll') else '0x40000'))
            a.lab('L_poll')
            if TWO:
                a("""s_waitcnt vmcnt(0)
                v_cmp_ne_u32 vcc, v20, v15
                v_cmp_ne_u32 s[48:49], 1, v23
                s_or_b64 vcc, vcc, s[48:49]
                s_cbranch_vccz L_ready
                buffer_load_dword v20, v35, s[POLLSRD], 0 offen sc1
                buffer_load_dword v23, v35, s[POLLSRD], s50 offen sc1""")
            else:
              for k in range(PD):
                a(f"""s_waitcnt vmcnt({PD-1})
                v_cmp_ne_u32 vcc, v{PR[k]}, v15
                s_cbranch_vccz L_ready
                buffer_load_dword v{PR[k]}, v35, s[POLLSRD], 0 offen sc1""")
            a("""s_sub_u32 s47, s47, 1
            s_cbranch_scc0 L_poll""")
        else:
            a("""s_cmp_lg_u32 s23, 0
            s_cbranch_scc1 L_nopoll0
            buffer_load_dword v18, v35, s[POLLSRD], 0 offen sc1""")
            a.lab('L_nopoll0')
            for kt,kk in groups[pre:mid]: consts(kt,[kk])
            if not OPT.get('atret') and not OPT.get('tsig'): ts(a,6)
            a("""s_cmp_lg_u32 s23, 0
            s_cbranch_scc1 L_ready
            s_mov_b32 s47, %s"""%('0' if OPT.get('nopoll') else '0x40000'))
            a.lab('L_poll')
            a("""s_waitcnt vmcnt(0)
            v_cmp_ne_u32 vcc, v18, v15
            s_cbranch_vccz L_ready
            s_sub_u32 s47, s47, 1
            s_cbranch_scc1 L_ready
            buffer_load_dword v18, v35, s[POLLSRD], 0 offen sc1
            s_branch L_poll""")
    a.lab('L_ready')
    a('s_barrier')
    if OPT.get('prio'): a('s_setprio %d'%OPT['prio'])
    if OPT.get('dry') and not OPT.get('sen'): a('s_mov_b64 vcc, 0')
    ts(a,7)
    if OPT.get('sen'):
        NA=208
        a('s_mov_b32 s47, 0x20000\ns_add_u32 s36, s30, 0x20000\ns_mov_b32 s44, 0xffff\nv_cmp_eq_u32 s[48:49], 0, v1')
        a.lab('L_tld')
        a(f"""buffer_load_dwordx4 {vr(NA,4)}, v8, s[12:15], s29 offen sc1
        buffer_load_dwordx4 {vr(MI,4)}, v11, s[12:15], s31 offen sc1
        buffer_load_dwordx4 {vr(NA+4,4)}, v8, s[12:15], s34 offen sc1
        buffer_load_dwordx4 {vr(MI+4,4)}, v9, s[12:15], s35 offen sc1
        s_cmp_lg_u32 s24, 0
        s_cbranch_scc1 L_p2_nz
        buffer_load_ushort v24, v12, s[12:15], s30 offen sc1
        buffer_load_ushort v25, v0, s[12:15], s36 offen sc1""")
        a.lab('L_p2_nz')
        if OPT.get('dry'):
            a("s_cmp_lg_u32 s47, 0x20000\ns_cbranch_scc1 L_dryret\ns_cmp_lg_u32 s23, %d\ns_cbranch_scc1 L_dryret\ns_mov_b64 vcc, -1\ns_branch L_nob"%OPT['dry'])
            a.lab('L_dryret')
        a('s_waitcnt vmcnt(0)')
        ts(a,8)
        a('s_cmp_lg_u32 s24, 0\ns_cbranch_scc1 L_p2_nofix')
        a(f"""v_lshlrev_b32 v24, 16, v24
        v_lshlrev_b32 v25, 16, v25
        v_bfi_b32 v24, s44, v{MI+3}, v24
        v_bfi_b32 v25, s44, v{MI+7}, v25
        v_cndmask_b32 v{MI+3}, v{MI+3}, v24, s[48:49]
        v_cndmask_b32 v{MI+7}, v{MI+7}, v25, s[48:49]""")
        a.lab('L_p2_nofix')
        M=T0+8
        for k in range(4): a(f'v_pk_max_u16 v{M+k}, v{NA+k}, v{NA+4+k}')
        for k in range(4): a(f'v_pk_max_u16 v{M+4+k}, v{MI+k}, v{MI+4+k}')
        for k in range(4): a(f'v_pk_max_u16 v{M+k}, v{M+k}, v{M+4+k}')
        a(f"""v_pk_max_u16 v{M}, v{M}, v{M+1}
        v_pk_max_u16 v{M+2}, v{M+2}, v{M+3}
        s_sub_u32 s47, s47, 1
        v_pk_max_u16 v{M}, v{M}, v{M+2}
        s_cbranch_scc1 L_tok
        v_lshrrev_b32 v{M+1}, 16, v{M}
        v_max_u16 v{M}, v{M}, v{M+1}
        v_cmp_eq_u16 vcc, -1, v{M}
        s_cbranch_vccnz L_tld""")
        a.lab('L_tok')
        if OPT.get('dry'): a('s_mov_b64 vcc, 0')
        a(f'ds_write_b128 v13, {vr(NA,4)}\nds_write_b128 v13, {vr(NA+4,4)} offset:1024')
    else:
        a(f"""buffer_load_dwordx4 {vr(NA,4)}, v8, s[12:15], s29 offen sc1
        buffer_load_dwordx4 {vr(MI,4)}, v11, s[12:15], s31 offen sc1
        buffer_load_dwordx4 {vr(NA+4,4)}, v8, s[12:15], s34 offen sc1
        buffer_load_dwordx4 {vr(MI+4,4)}, v9, s[12:15], s35 offen sc1
        s_cmp_lg_u32 s24, 0
        s_cbranch_scc1 L_p2_nz
        s_add_u32 s36, s30, 0x20000
        buffer_load_ushort v24, v12, s[12:15], s30 offen sc1
        buffer_load_ushort v25, v0, s[12:15], s36 offen sc1""")
        a.lab('L_p2_nz')
        if not OPT.get('rc'): srd(a,8,64,65,'0x400000')
        for kt,kk in groups[mid:]: consts(kt,[kk])
        a('s_waitcnt vmcnt(0)')
        ts(a,8)
        a.lab('L_dry')
        a(f'ds_write_b128 v13, {vr(NA,4)}\nds_write_b128 v13, {vr(NA+4,4)} offset:1024')
        a('s_cmp_lg_u32 s24, 0\ns_cbranch_scc1 L_p2_nofix')
        a(f"""s_mov_b32 s44, 0xffff
        v_cmp_eq_u32 s[48:49], 0, v1
        v_lshlrev_b32 v24, 16, v24
        v_lshlrev_b32 v25, 16, v25
        v_bfi_b32 v24, s44, v{MI+3}, v24
        v_bfi_b32 v25, s44, v{MI+7}, v25
        v_cndmask_b32 v{MI+3}, v{MI+3}, v24, s[48:49]
        v_cndmask_b32 v{MI+7}, v{MI+7}, v25, s[48:49]""")
        a.lab('L_p2_nofix')
    for i in range(2):
        for k in range(4):
            a(f'v_alignbit_b32 v{T0+4*i+k}, v{MI+4*i+3-k}, v{MI+4*i+3-k}, 16')
    a(f'ds_write_b128 v13, {vr(T0,4)} offset:8192\nds_write_b128 v13, {vr(T0+4,4)} offset:9216')
    a('s_waitcnt lgkmcnt(0)')
    if OPT.get('dry'): a('s_cbranch_vccnz L_nob')
    a('s_barrier')
    a.lab('L_nob')
    ts(a,9)
    reads=[(kk,ct,q) for kk in range(4) for ct in range(4) for q in range(2)]
    issued=0
    def issue(upto):
        nonlocal issued
        while issued<min(upto,len(reads)):
            kk,ct,q=reads[issued]
            a(f'ds_read_b64_tr_b16 {vr(AR+16*kk+4*ct+2*q,2)}, v{26+ct} offset:{4096*kk+2048*q}')
            issued+=1
    issue(14)
    for kk in range(4):
        for ct in range(4):
            need=2*(4*kk+ct)+2
            a(f's_waitcnt lgkmcnt({issued-need})')
            for kt in range(2):
                acc=ACC+16*kt+4*ct
                a(mfma(acc,AR+16*kk+4*ct,BC+16*kt+4*kk,None if kk==0 else acc))
            issue(need+14)
    a('s_nop 1')
    for kt in range(2):
        for p in range(2):
            t0=ACC+16*kt+8*p; t1=t0+4
            o=[164,168,172,176][2*kt+p]
            a(f"""v_cvt_pk_bf16_f32 v{o}, v{t0}, v{t0+1}
            v_cvt_pk_bf16_f32 v{o+1}, v{t0+2}, v{t0+3}
            v_cvt_pk_bf16_f32 v{o+2}, v{t1}, v{t1+1}
            v_cvt_pk_bf16_f32 v{o+3}, v{t1+2}, v{t1+3}
            s_nop 1
            v_permlane16_swap_b32 v{o}, v{o+2}
            v_permlane16_swap_b32 v{o+1}, v{o+3}""")
            a(f's_add_u32 s41, s38, {kt*524288}')
            if OPT.get('dry'): a(f's_cbranch_vccnz L_ns{kt}{p}' if (kt,p)!=(1,1) else 's_cbranch_vccnz L_dryret')
            a(f'buffer_store_dwordx4 {vr(o,4)}, v14, s[8:11], s41 offen offset:{64*p}')
            if OPT.get('dry') and (kt,p)!=(1,1): a.lab(f'L_ns{kt}{p}')
    ts(a,10)
    a.lab('L_done')
    tsdump(a)
    a('s_endpgm')
    a.lab('L_idle')
    if OPT.get('ws'):
        a(f"""s_cmp_lg_u32 s2, 258
        s_cbranch_scc1 L_end""")
        ts(a,0)
        a(f"""s_nop 0
        s_load_dwordx4 s[64:67], s[0:1], 88
        v_cmp_gt_u32 vcc, {min(2*NS,64)}, v0
        s_and_b64 exec, exec, vcc
        s_cbranch_execz L_end
        v_mul_u32_u24 v1, {ST}, v0
        v_mov_b32 v2, 0
        v_add_u32 v1, 0x210000, v1
        s_waitcnt lgkmcnt(0)""")
        if OPT.get('off'): a(f's_add_u32 s66, s66, {OPT["off"]}\ns_addc_u32 s67, s67, 0')
        srd(a,12,66,67,'0x240000')
        srd(a,16,64,65,'256')
        for q in range(1,2*NS//64): a(f's_mov_b32 s20, {64*ST*q}\nbuffer_store_dword v2, v1, s[12:15], s20 offen sc1')
        a("""buffer_store_dword v2, v1, s[12:15], 0 offen sc1
        v_mov_b32 v3, 1
        s_mov_b64 exec, 1
        s_waitcnt vmcnt(0)""")
        ts(a,1)
        a('buffer_store_dword v3, v2, s[16:19], 0 offen sc1')
        if INSTR:
            a('s_mov_b32 s68, s66\ns_mov_b32 s69, s67\ns_mov_b32 s23, 0\ns_branch L_done')
    a.lab('L_end')
    a('s_endpgm')
    t=a.txt().replace('s[POLLSRD]','s[12:15]' if OPT.get('ws') else 's[16:19]')
    return head(name)+t+desc(name,216,96)

def build(path):
    ref=open('cdna_kernels/%s.s.ref'%NAME).read()
    hdr=ref.split('; Override')[0]
    s=hdr
    s+="; 2D DFT (real part) of x via point-symmetric (Hartley) folding; DFT constants are generated in-kernel.\n"
    s+="; One launch: stage 1 publishes T (write-through) and signals counters in d_debug; stage 2 waits on them.\n"
    s+="; @launch grid=(272,1,1) block=(256,1,1) lds=49152\n"
    s+='.amdgcn_target "amdgcn-amd-amdhsa--gfx950"\n'
    s+=fused(NAME+'_kernel')
    open(path,'w').write(s)
if __name__=='__main__':
    for x in sys.argv[2:]:
        if x=='instr': INSTR=True
        else:
            k,v=x.split('='); OPT[k]=int(v)
    build(sys.argv[1])
```

```python
import struct, sys
NAME='concat_heads__spectral_fnet__spectral_fnet__prompt'
def f2h(x): return '0x%08x'%struct.unpack('<I',struct.pack('<f',x))[0]
INSTR=False
OPT={}
class A:
    def __init__(s): s.l=[]
    def __call__(s,t):
        for x in t.strip('\n').split('\n'):
            s.l.append('  '+x.strip())
    def lab(s,n): s.l.append(n+':')
    def txt(s): return '\n'.join(s.l)+'\n'
def vr(a,n): return 'v[%d:%d]'%(a,a+n-1)
def mfma(d,a,b,c=None):
    return 'v_mfma_f32_16x16x32_bf16 %s, %s, %s, %s'%(vr(d,4),vr(a,4),vr(b,4),'0' if c is None else vr(c,4))
def srd(a,d,lo,hi,n):
    a(f's_mov_b32 s{d}, s{lo}\ns_and_b32 s{d+1}, s{hi}, 0xffff\ns_mov_b32 s{d+2}, {n}\ns_mov_b32 s{d+3}, 0x20000')
def desc(name,vg,sg):
    return f""".section .rodata,"a"
.p2align 6
.amdhsa_kernel {name}
  .amdhsa_next_free_vgpr {vg}
  .amdhsa_next_free_sgpr {sg}
  .amdhsa_accum_offset {(vg+3)//4*4}
  .amdhsa_group_segment_fixed_size 0
  .amdhsa_kernarg_size 104
  .amdhsa_user_sgpr_count 2
  .amdhsa_user_sgpr_kernarg_segment_ptr 1
  .amdhsa_system_sgpr_workgroup_id_x 1
.end_amdhsa_kernel
"""
def head(name):
    return f""".text
.globl {name}
.p2align 8
.type {name},@function
{name}:
"""
TS0=72
NTS=12
def ts(a,k):
    if INSTR: a(f's_memrealtime s[{TS0+2*k}:{TS0+1+2*k}]\ns_waitcnt lgkmcnt(0)')
def tsdump(a):
    if not INSTR: return
    a('s_waitcnt vmcnt(0)')
    ts(a,NTS-1)
    a('s_mov_b32 s8, s68\ns_and_b32 s9, s69, 0xffff\ns_mov_b32 s10, 0x2000000\ns_mov_b32 s11, 0x20000')
    a(f's_lshl_b32 s48, s2, 8\ns_lshl_b32 s49, s23, 6\ns_add_u32 s48, s48, s49\ns_add_u32 s48, s48, {16<<20}')
    a('s_mov_b64 exec, 1\nv_mov_b32 v1, 0')
    for k in range(NTS):
        a(f'v_mov_b32 v2, s{TS0+2*k}\nbuffer_store_dword v2, v1, s[8:11], s48 offen offset:{4*k}')

def fused(name):
    NSH=OPT.get('nsh',16)
    a=A()
    a("""s_lshr_b32 s20, s2, 4
    s_lshl_b32 s20, s20, 3
    s_and_b32 s21, s2, 7
    s_add_u32 s20, s20, s21
    s_cmp_ge_u32 s20, 130
    s_cbranch_scc1 L_idle""")
    if OPT.get('prio'): a('s_setprio %d'%OPT['prio'])
    if INSTR: a(f's_memrealtime s[{TS0}:{TS0+1}]')
    TAB=OPT.get('tab')
    a("""s_load_dwordx2 s[4:5], s[0:1], 0
    s_load_dwordx2 s[6:7], s[0:1], 40""")
    if TAB: a("""s_load_dwordx4 s[52:55], s[0:1], 24
    s_load_dwordx4 s[56:59], s[0:1], 64""")
    a("""s_load_dwordx4 s[64:67], s[0:1], 80
    s_load_dwordx2 s[68:69], s[0:1], 96
    v_lshrrev_b32 v1, 6, v0
    v_and_b32 v2, 63, v0
    s_bfe_u32 s22, s2, 0x10003
    v_readfirstlane_b32 s23, v1
    s_cmp_ge_u32 s20, 65
    s_cselect_b32 s24, 65, 0
    s_sub_u32 s25, s20, s24""")
    a("""s_cmp_eq_u32 s25, 64
    s_cselect_b32 s27, 0xffffffc0, s25
    s_cselect_b32 s28, %s, 0
    v_lshlrev_b32 v3, 4, v2
    s_lshl_b32 s29, s23, 9
    s_add_u32 s30, s29, s25
    s_lshl_b32 s30, s30, 10
    s_sub_u32 s31, s29, s27
    s_lshl_b32 s32, s23, 13"""%f2h(1/32))
    C1,S1,NS1,TC,TS,ST2,F3=8,12,16,20,24,28,34
    if TAB:
        a("""v_and_b32 v4, 15, v2
        v_lshrrev_b32 v5, 4, v2
        s_lshl_b32 s35, s22, 18
        v_lshlrev_b32 v43, 3, v5
        s_lshl_b32 s36, s22, 14
        v_lshl_add_u32 v40, v4, 14, v43
        v_lshl_add_u32 v41, v4, 10, v43
        v_lshl_add_u32 v42, v4, 15, v43""")
    a("""s_cmp_lg_u32 s24, 0
    s_waitcnt lgkmcnt(0)
    s_cselect_b32 s4, s6, s4
    s_cselect_b32 s5, s7, s5""")
    if OPT.get('xt'): ts(a,1)
    if TAB:
        a("""s_cselect_b32 s52, s56, s52
        s_cselect_b32 s53, s57, s53
        s_cselect_b32 s54, s58, s54
        s_cselect_b32 s55, s59, s55""")
        srd(a,56,52,53,'0x80000')
        srd(a,60,54,55,'0x80000')
        a(f"""buffer_load_dwordx2 {vr(C1,2)}, v40, s[56:59], s35 offen
        buffer_load_dwordx2 {vr(NS1,2)}, v40, s[60:63], s35 offen
        buffer_load_dwordx2 {vr(C1+2,2)}, v40, s[56:59], s35 offen offset:32
        buffer_load_dwordx2 {vr(NS1+2,2)}, v40, s[60:63], s35 offen offset:32""")
    srd(a,8,4,5,'0x200000')
    for i in range(4):
        a(f"""s_add_u32 m0, s32, {2048*i}
        s_add_u32 s33, s30, {i*0x20000}
        s_add_u32 s34, s31, {128*i}
        buffer_load_dwordx4 v3, s[8:11], s33 offen lds
        s_and_b32 s34, s34, 2047
        s_add_u32 m0, s32, {2048*i+1024}
        s_lshl_b32 s34, s34, 10
        buffer_load_dwordx4 v3, s[8:11], s34 offen lds""")
    if TAB:
        a(f"""buffer_load_dwordx2 v[208:209], v41, s[56:59], s36 offen
        buffer_load_dwordx2 v[210:211], v41, s[60:63], s36 offen
        buffer_load_dwordx2 {vr(ST2+2,2)}, v42, s[56:59], 0 offen
        buffer_load_dwordx2 {vr(ST2,2)}, v42, s[60:63], 0 offen""")
    if OPT.get('xt'):
        ts(a,2); a('s_waitcnt vmcnt(4)'); ts(a,3); a('s_waitcnt vmcnt(0)'); ts(a,4); a('s_branch L_done')
    if OPT.get('off'):
        assert not INSTR
        a(f's_add_u32 s68, s68, {OPT["off"]}\ns_addc_u32 s69, s69, 0')
    srd(a,12,68,69,'0x240000')
    if OPT.get('sen'):
        a("""v_and_b32 v4, 15, v2
        v_lshrrev_b32 v5, 4, v2
        v_mov_b32 v200, -1
        v_mov_b32 v201, -1
        v_and_b32 v40, 1, v5
        v_lshrrev_b32 v41, 1, v5
        v_lshlrev_b32 v215, 10, v4
        v_lshl_add_u32 v215, v40, 6, v215
        v_lshl_add_u32 v215, v41, 4, v215
        s_lshl_b32 s37, s23, 8
        s_lshl_b32 s38, s22, 5
        s_add_u32 s37, s37, s38
        v_add_u32 v215, s37, v215
        s_lshl_b32 s39, s20, 14
        v_mov_b32 v202, -1
        v_mov_b32 v203, -1
        buffer_store_dwordx4 v[200:203], v215, s[12:15], s39 offen sc1
        buffer_store_dwordx4 v[200:203], v215, s[12:15], s39 offen offset:128 sc1""")
    srd(a,16,66,67,'256')
    if OPT.get('ws'):
        ST=OPT.get('st',256); NS=OPT['ws']
        a(f"""s_and_b32 s45, s2, {NS-1}
        s_cmp_lg_u32 s24, 0
        s_cselect_b32 s46, {NS*OPT.get('rep',1)}, 0
        s_add_u32 s45, s45, s46
        s_mul_i32 s45, s45, {ST}
        s_add_u32 s45, s45, 0x210000""")
    if not OPT.get('ws'): a(f"""s_lshl_b32 s45, s25, 1
    s_add_u32 s45, s45, s22
    s_and_b32 s45, s45, {NSH-1}
    s_lshl_b32 s45, s45, 2
    s_cmp_lg_u32 s24, 0
    s_cselect_b32 s46, 128, 0
    s_add_u32 s45, s45, s46""")
    if OPT.get('byte'):
        a(f"""s_lshl_b32 s45, s25, 1
        s_add_u32 s45, s45, s22
        s_and_b32 s45, s45, 127
        s_add_u32 s45, s45, s46""")
    if TAB:
        t=72
        a(f"""v_cvt_f32_u32 v{t}, v4
        v_lshlrev_b32 v{t+1}, 2, v5
        v_cvt_f32_u32 v{t+1}, v{t+1}
        v_mul_f32 v{t+2}, {f2h(1/16)}, v{t}
        v_mul_f32 v{t+3}, v{t+1}, v{t+2}
        v_fma_f32 v{t+3}, v{t}, s28, v{t+3}
        v_add_f32 v{t+4}, {f2h(0.125)}, v{t+3}
        v_add_f32 v{t+5}, {f2h(-0.125)}, v{t+3}""")
        for r in range(4):
            if r==0: continue
            a(f'v_fmamk_f32 v{t+6+2*r}, v{t+2}, {f2h(r)}, v{t+4}\nv_fmamk_f32 v{t+7+2*r}, v{t+2}, {f2h(r)}, v{t+5}')
        a(f'v_cos_f32 v{t+16}, v{t+4}\nv_cos_f32 v{t+17}, v{t+5}')
        for r in range(1,4):
            a(f'v_cos_f32 v{t+16+2*r}, v{t+6+2*r}\nv_cos_f32 v{t+17+2*r}, v{t+7+2*r}')
        a('s_nop 0')
        for r in range(4):
            a(f'v_cvt_pk_bf16_f32 v{F3+r}, v{t+16+2*r}, v{t+17+2*r}')
    else:
        a(f"""v_and_b32 v4, 15, v2
        v_lshrrev_b32 v5, 4, v2
        s_lshl_b32 s35, s22, 4
        v_add_u32 v6, s35, v4
        v_cvt_f32_u32 v6, v6
        v_lshlrev_b32 v7, 2, v5
        v_cvt_f32_u32 v7, v7
        v_cvt_f32_u32 v38, v4
        v_mul_f32 v39, {f2h(1/32)}, v6
        v_mul_f32 v6, {f2h(1/512)}, v6
        v_mul_f32 v40, v7, v39
        v_mul_f32 v41, v7, v6
        v_mul_f32 v42, {f2h(1/16)}, v38
        v_mul_f32 v43, v7, v42
        v_fma_f32 v44, v38, s28, v43""")
        t=48
        for q in range(2):
            for r in range(4):
                a(f'v_fmamk_f32 v{t+4*q+r}, v39, {f2h(16*q+r)}, v40')
        for k in range(8):
            a(f'v_cos_f32 v{t+8+k}, v{t+k}\nv_sin_f32 v{t+16+k}, v{t+k}')
        for r in range(4):
            a(f'v_fmamk_f32 v{t+24+r}, v6, {f2h(r)}, v41')
        for k in range(4):
            a(f'v_cvt_pk_bf16_f32 v{C1+k}, v{t+8+2*k}, v{t+9+2*k}\nv_cvt_pk_bf16_f32 v{S1+k}, v{t+16+2*k}, v{t+17+2*k}')
        for r in range(4):
            a(f'v_cos_f32 v{TC+r}, v{t+24+r}\nv_sin_f32 v{TS+r}, v{t+24+r}')
        for k in range(4):
            a(f'v_xor_b32 v{NS1+k}, 0x80008000, v{S1+k}')
        for r in range(4):
            a(f'v_fmamk_f32 v{t+r}, v42, {f2h(r)}, v43\nv_fmamk_f32 v{t+4+r}, v42, {f2h(r)}, v44')
        for r in range(4):
            a(f'v_cos_f32 v{t+8+r}, v{t+r}\nv_sin_f32 v{t+12+r}, v{t+r}')
        for r in range(4):
            a(f'v_add_f32 v{t+16+r}, {f2h(0.125)}, v{t+4+r}\nv_add_f32 v{t+20+r}, {f2h(-0.125)}, v{t+4+r}')
        a(f"""v_cvt_pk_bf16_f32 v{ST2+2}, v{t+8}, v{t+9}
        v_cvt_pk_bf16_f32 v{ST2+3}, v{t+10}, v{t+11}
        v_cvt_pk_bf16_f32 v{ST2+4}, v{t+12}, v{t+13}
        v_cvt_pk_bf16_f32 v{ST2+5}, v{t+14}, v{t+15}""")
        for r in range(4):
            a(f'v_cos_f32 v{t+24+r}, v{t+16+r}\nv_cos_f32 v{t+28+r}, v{t+20+r}')
        a(f'v_xor_b32 v{ST2}, 0x80008000, v{ST2+4}\nv_xor_b32 v{ST2+1}, 0x80008000, v{ST2+5}')
        for r in range(4):
            a(f'v_cvt_pk_bf16_f32 v{F3+r}, v{t+24+r}, v{t+28+r}')
    a(f"""v_lshlrev_b32 v38, 3, v2
    v_add_u32 v38, s32, v38
    v_bfe_u32 v40, v4, 1, 2
    v_xor_b32 v41, s23, v40
    v_xor_b32 v42, v5, v40
    v_lshlrev_b32 v43, 6, v4
    v_lshl_add_u32 v41, v41, 4, v43
    v_lshl_add_u32 v42, v42, 4, v43
    v_lshlrev_b32 v39, 12, v5
    v_add_u32 v39, v39, v41
    v_add_u32 v39, 0x8000, v39
    s_lshl_b32 s36, s23, 12
    s_add_u32 s36, s36, 0x8000
    v_add_u32 v6, s36, v42""")
    if not OPT.get('sen'): a("""v_and_b32 v40, 1, v5
    v_lshrrev_b32 v41, 1, v5
    v_lshlrev_b32 v7, 10, v4
    v_lshl_add_u32 v7, v40, 6, v7
    v_lshl_add_u32 v7, v41, 4, v7
    s_lshl_b32 s37, s23, 8
    s_lshl_b32 s38, s22, 5
    s_add_u32 s37, s37, s38
    v_add_u32 v7, s37, v7
    s_lshl_b32 s39, s20, 14""")
    if OPT.get('sen'):
        NS=OPT['ws']; ST=OPT.get('st',256); MK=7 if NS==8 else (NS-1)&~8
        a(f"""s_bfe_u32 s21, s2, 0x10007
        v_and_b32 v208, {MK}, v2
        v_cmp_eq_u32 vcc, s21, v208
        v_mov_b32 v209, {128//NS}
        v_and_b32 v208, {min(NS,64)-1}, v2
        s_mul_i32 s46, s21, {NS*ST}
        v_cndmask_b32 v210, 0, {2 if NS==8 else 1}, vcc
        v_add_u32 v209, v209, v210
        s_add_u32 s46, s46, 0x210000
        v_mul_u32_u24 v208, {ST}, v208
        v_add_u32 v208, s46, v208
        v_mov_b32 v212, s45
        v_mov_b32 v213, 1
        v_mov_b32 v214, 0""")
    if OPT.get('tshape')==1:
        a("""v_lshlrev_b32 v7, 10, v4
        v_lshl_add_u32 v7, v40, 5, v7
        v_lshl_add_u32 v7, v41, 4, v7
        s_lshl_b32 s37, s23, 7
        s_lshl_b32 s38, s22, 9
        s_add_u32 s37, s37, s38
        v_add_u32 v7, s37, v7""")
    if OPT.get('tshape')==2:
        a("""v_and_b32 v42, 7, v4
        v_lshrrev_b32 v43, 3, v4
        v_lshlrev_b32 v7, 10, v42
        v_lshl_add_u32 v7, v43, 6, v7
        v_lshl_add_u32 v7, v40, 5, v7
        v_lshl_add_u32 v7, v41, 4, v7
        s_lshl_b32 s37, s23, 7
        s_lshl_b32 s38, s22, 9
        s_add_u32 s37, s37, s38
        v_add_u32 v7, s37, v7
        s_add_u32 s40, s39, 8192""")
    XA=40; D1=72; B2=104; D2=120; P=152; A3=168; D3=184; O=200
    def rd(i):
        for ab in range(2):
            for q in range(2):
                a(f'ds_read_b64_tr_b16 {vr(XA+8*i+4*ab+2*q,2)}, v38 offset:{(2*i+ab)*1024+512*q}')
    ts(a,1)
    if TAB:
        a('s_waitcnt vmcnt(8)'); rd(0); rd(1)
        for k in range(4): a(f'v_xor_b32 v{S1+k}, 0x80008000, v{NS1+k}')
        a('s_waitcnt vmcnt(4)'); rd(2); rd(3)
    else:
        SN=2 if OPT.get('sen') else 0
        a(f's_waitcnt vmcnt({4+SN})'); rd(0); rd(1)
        a(f's_waitcnt vmcnt({SN})'); rd(2); rd(3)
        if SN:
            a('s_cmp_lg_u32 s23, 0\ns_cbranch_scc1 L_nif\nbuffer_load_dword v211, v214, s[16:19], 0 offen sc1')
            a.lab('L_nif')
    if INSTR: a('s_waitcnt lgkmcnt(0)')
    ts(a,2)
    def st1(i):
        xa=XA+8*i; xb=xa+4; re=D1+8*i; im=re+4
        a(mfma(re,xa,C1)); a(mfma(im,xa,NS1)); a(mfma(re,xb,S1,re)); a(mfma(im,xb,C1,im))
    def tw(i):
        re=D1+8*i; im=re+4; o=[]
        tmp=XA+8*i
        for r in range(4):
            o.append(f'v_mul_f32 v{tmp+r}, v{re+r}, v{TC+r}')
            o.append(f'v_mul_f32 v{tmp+4+r}, v{im+r}, v{TC+r}')
        for r in range(4):
            if TAB:
                o.append(f'v_fma_f32 v{tmp+r}, -v{im+r}, v{TS+r}, v{tmp+r}')
                o.append(f'v_fmac_f32 v{tmp+4+r}, v{re+r}, v{TS+r}')
            else:
                o.append(f'v_fmac_f32 v{tmp+r}, v{im+r}, v{TS+r}')
                o.append(f'v_fma_f32 v{tmp+4+r}, -v{re+r}, v{TS+r}, v{tmp+4+r}')
        b=B2+4*i
        o+= [f'v_cvt_pk_bf16_f32 v{b}, v{tmp}, v{tmp+1}',f'v_cvt_pk_bf16_f32 v{b+1}, v{tmp+2}, v{tmp+3}',
             f'v_cvt_pk_bf16_f32 v{b+2}, v{tmp+4}, v{tmp+5}',f'v_cvt_pk_bf16_f32 v{b+3}, v{tmp+6}, v{tmp+7}']
        return o
    def st2(i):
        b=B2+4*i; re=D2+8*i; im=re+4
        return [mfma(re,ST2+2,b), mfma(im,ST2,b)]
    def pk(i):
        re=D2+8*i; im=re+4
        return [f'v_cvt_pk_bf16_f32 v{P+4*r+i}, v{re+r}, v{im+r}' for r in range(4)]
    a('s_waitcnt lgkmcnt(8)'); st1(0); st1(1)
    a('s_waitcnt lgkmcnt(0)'); st1(2); st1(3)
    if TAB:
        a(f"""s_waitcnt vmcnt(0)
        v_lshlrev_b32 v{TC}, 16, v0R
        v_and_b32 v{TC+1}, 0xffff0000, v0R
        v_lshlrev_b32 v{TC+2}, 16, v1R
        v_and_b32 v{TC+3}, 0xffff0000, v1R
        v_lshlrev_b32 v{TS}, 16, v2R
        v_and_b32 v{TS+1}, 0xffff0000, v2R
        v_lshlrev_b32 v{TS+2}, 16, v3R
        v_and_b32 v{TS+3}, 0xffff0000, v3R
        v_xor_b32 v{ST2+4}, 0x80008000, v{ST2}
        v_xor_b32 v{ST2+5}, 0x80008000, v{ST2+1}""".replace('v0R','v208').replace('v1R','v209').replace('v2R','v210').replace('v3R','v211'))
    for x in tw(0): a(x)
    for x in tw(1): a(x)
    for x in st2(0): a(x)
    for x in tw(2): a(x)
    for x in st2(1): a(x)
    for x in tw(3): a(x)
    for x in st2(2): a(x)
    for x in pk(0): a(x)
    for x in st2(3): a(x)
    for x in pk(1): a(x)
    a('s_nop 1')
    for x in pk(2): a(x)
    a('s_nop 1')
    for x in pk(3): a(x)
    for r in range(4):
        a(f'ds_write_b128 v39, {vr(P+4*r,4)} offset:{1024*r}')
    a('s_waitcnt vmcnt(0) lgkmcnt(0)' if OPT.get('sen') else 's_waitcnt lgkmcnt(0)')
    ts(a,3)
    a('s_barrier')
    for u in range(4):
        a(f'ds_read_b128 {vr(A3+4*u,4)}, v6 offset:{1024*u}')
    if OPT.get('sen'):
        a("""s_cmp_lg_u32 s23, 0
        s_cbranch_scc1 L_noif
        s_mov_b32 s47, 0x40000""")
        a.lab('L_ipoll')
        a("""v_cmp_eq_u32 vcc, 0, v211
        s_cbranch_vccz L_iok
        s_sub_u32 s47, s47, 1
        s_cbranch_scc1 L_iok
        buffer_load_dword v211, v214, s[16:19], 0 offen sc1
        s_waitcnt vmcnt(0)
        s_branch L_ipoll""")
        a.lab('L_iok')
        a("""s_mov_b64 exec, 1
        buffer_atomic_add v213, v212, s[12:15], 0 offen
        s_mov_b64 exec, -1
        buffer_load_dword v210, v208, s[12:15], 0 offen sc1""")
        a.lab('L_noif')
    elif OPT.get('ws'):
        a('s_cmp_lg_u32 s23, 0\ns_cbranch_scc1 L_noif\nv_mov_b32 v18, 0\nbuffer_load_dword v19, v18, s[16:19], 0 offen sc1')
        a.lab('L_noif')
    for u in range(4):
        a(f's_waitcnt lgkmcnt({3-u})'); a(mfma(D3+4*u,A3+4*u,F3))
    a('s_nop 4')
    for p in range(2):
        if p==1: a('s_nop 1')
        t0=D3+8*p; t1=t0+4; o=O+4*p
        a(f"""v_cvt_pk_bf16_f32 v{o}, v{t0}, v{t0+1}
        v_cvt_pk_bf16_f32 v{o+1}, v{t0+2}, v{t0+3}
        v_cvt_pk_bf16_f32 v{o+2}, v{t1}, v{t1+1}
        v_cvt_pk_bf16_f32 v{o+3}, v{t1+2}, v{t1+3}
        s_nop 1
        v_permlane16_swap_b32 v{o}, v{o+2}
        v_permlane16_swap_b32 v{o+1}, v{o+3}
        s_nop 1
        buffer_store_dwordx4 {vr(o,4)}, v{215 if OPT.get('sen') else 7}, s[12:15], s{39 if (p==0 or OPT.get('tshape',0)!=2) else 40} offen offset:{[128,64,0][OPT.get('tshape',0)]*p} sc1""")
    ts(a,4)
    if OPT.get('prio') and not OPT.get('sen'): a('s_setprio 0')
    if OPT.get('sen'): a('s_cmp_ge_u32 s2, 256\ns_cbranch_scc1 L_done')
    elif OPT.get('xskip'): a('s_cmp_ge_u32 s2, 256\ns_cbranch_scc1 L_drain')
    a("""s_and_b32 s20, s2, 7
    s_bfe_u32 s21, s2, 0x10007
    s_bfe_u32 s22, s2, 0x10006
    s_bfe_u32 s24, s2, 0x30003
    s_sub_u32 s25, 16, s20
    s_cmp_eq_u32 s20, 0
    s_cselect_b32 s25, 8, s25
    s_cmp_lg_u32 s22, 0
    s_cselect_b32 s25, s25, s20
    s_sub_u32 s26, 16, s25
    s_and_b32 s26, s26, 15
    s_sub_u32 s27, 7, s24""")
    a("""s_mul_i32 s28, s21, 65
    s_lshl_b32 s29, s23, 4
    s_add_u32 s28, s28, s29
    s_lshl_b32 s28, s28, 14
    s_lshl_b32 s29, s25, 10
    s_lshl_b32 s30, s24, 7
    s_add_u32 s29, s29, s30
    s_add_u32 s29, s29, s28
    s_lshl_b32 s30, s26, 10
    s_add_u32 s30, s30, s28
    s_lshl_b32 s31, s27, 7
    s_add_u32 s31, s31, s30
    v_lshrrev_b32 v3, 3, v2
    v_and_b32 v1, 7, v2
    v_lshlrev_b32 v6, 1, v5
    v_xor_b32 v6, v1, v6
    v_lshlrev_b32 v0, 14, v3
    v_lshl_add_u32 v8, v1, 4, v0
    v_lshlrev_b32 v9, 4, v1
    v_sub_u32 v9, 114, v9
    v_add_u32 v9, v0, v9
    s_cmp_eq_u32 s23, 0
    s_cselect_b32 s32, 0x100000, 0
    v_mov_b32 v10, s32
    v_cmp_gt_u32 vcc, 8, v2
    s_lshl_b32 s33, s23, 11
    s_add_u32 s34, s29, 0x20000
    v_cndmask_b32 v10, 0, v10, vcc
    v_add_u32 v11, v9, v10
    v_add_u32 v12, v0, v10
    s_add_u32 s35, s31, 0x20000""")
    a("""v_lshlrev_b32 v13, 7, v3
    v_lshl_add_u32 v13, v6, 4, v13
    v_add_u32 v13, s33, v13
    v_bfe_u32 v30, v2, 2, 2
    v_and_b32 v31, 3, v2
    v_lshl_add_u32 v32, v5, 2, v30
    v_bfe_u32 v33, v32, 1, 2
    v_lshlrev_b32 v32, 7, v32
    v_lshl_add_u32 v32, v31, 3, v32""")
    for ct in range(4):
        a(f'v_xor_b32 v{26+ct}, {ct}, v33\nv_lshl_add_u32 v{26+ct}, v{26+ct}, 5, v32')
    a("""v_lshlrev_b32 v14, 15, v4
    v_and_b32 v30, 1, v5
    v_lshl_add_u32 v14, v30, 5, v14
    v_lshrrev_b32 v30, 1, v5
    v_lshl_add_u32 v14, v30, 4, v14
    s_lshl_b32 s37, s23, 9
    s_add_u32 s37, s37, s25
    s_lshl_b32 s38, s37, 11
    s_lshl_b32 s39, s21, 10
    s_add_u32 s38, s38, s39
    s_lshl_b32 s39, s24, 7
    s_add_u32 s38, s38, s39""")
    lo,ex=(2,130//NSH)
    a(f"""v_and_b32 v35, {NSH-1}, v2
    v_cmp_gt_u32 vcc, {lo}, v35
    v_mov_b32 v15, {ex}
    s_lshl_b32 s46, s21, 7
    v_lshlrev_b32 v35, 2, v35
    v_addc_co_u32 v15, vcc, 0, v15, vcc
    v_add_u32 v35, s46, v35""")
    if OPT.get('byte'): a('v_mov_b32 v15, 0x01010101')
    if OPT.get('ws'):
        MK=NS-1 if NS<=8 else (NS-1)&~8
        a(f"""v_and_b32 v35, {MK}, v2
        v_cmp_eq_u32 vcc, s21, v35
        v_mov_b32 v15, {128//NS}
        v_and_b32 v35, {min(NS,64)-1}, v2
        s_mul_i32 s46, s21, {NS*ST*OPT.get('rep',1)}
        v_cndmask_b32 v16, 0, {2 if NS<=8 else 1}, vcc
        s_and_b32 s47, s2, {OPT.get('rep',1)-1}
        s_mul_i32 s47, s47, {NS*ST}
        s_add_u32 s46, s46, s47
        v_add_u32 v15, v15, v16
        s_add_u32 s46, s46, 0x210000
        v_mul_u32_u24 v35, {ST}, v35
        v_add_u32 v35, s46, v35""")
    BC=36; AR=68; ACC=132; T0=172; MI=16; NA=68
    a(f"""v_lshlrev_b32 v30, 4, v4
    v_add_u32 v30, s37, v30
    v_cvt_f32_u32 v30, v30
    v_lshlrev_b32 v31, 2, v5
    v_cvt_f32_u32 v31, v31
    v_mul_f32 v30, {f2h(1/2048)}, v30
    v_add_f32 v32, {f2h(0.125)}, v30
    s_cmp_lg_u32 s25, 0
    s_cselect_b32 s40, 1, 0
    v_add_u32 v33, s40, v4
    v_and_b32 v33, 1, v33
    v_lshlrev_b32 v33, 31, v33
    v_xor_b32 v33, {f2h(-0.7071067811865476 if OPT.get('rc') else 0.7071067811865476)}, v33
    v_mov_b32 v34, {f2h(0.125)}
    v_cmp_eq_u32 s[42:43], 0, v5""")
    def consts(kt,kks):
        tf=30 if kt==0 else 32
        a(f'v_fma_f32 v{T0}, v31, v{tf}, -v34\nv_fma_f32 v{T0+1}, v31, v{tf}, v34')
        for kk in kks:
            base=T0+(0 if kk<2 else 1)
            tt=T0+2+(kk&1)*16
            for q in range(2):
                for r in range(4):
                    K=32*(kk&1)+16*q+r
                    a(f'v_fmamk_f32 v{tt+4*q+r}, v{tf}, {f2h(K)}, v{base}')
            for k in range(8): a(f'v_cos_f32 v{tt+8+k}, v{tt+k}')
            if kk==2:
                a(f'v_cndmask_b32 v{tt+8}, v{tt+8}, v33, s[42:43]')
            else:
                a('s_nop 0')
            for k in range(4):
                a(f'v_cvt_pk_bf16_f32 v{BC+16*kt+4*kk+k}, v{tt+8+2*k}, v{tt+9+2*k}')
    def rconsts(blocks,hdr):
        R=T0
        CD=[R,R+4]; SD=[R+1,R+5]; NSD=[R+2,R+6]; CD2=[R+3,R+7]; TH=[R+8,R+9]
        for kt in (range(2) if hdr else []):
            tf=30 if kt==0 else 32
            a(f'v_cos_f32 v{CD[kt]}, v{tf}\nv_sin_f32 v{SD[kt]}, v{tf}\nv_fma_f32 v{TH[kt]}, v31, v{tf}, -v34')
        W=R+10
        for kt in (range(2) if hdr else []):
            a(f'v_xor_b32 v{NSD[kt]}, 0x80000000, v{SD[kt]}\nv_add_f32 v{CD2[kt]}, v{CD[kt]}, v{CD[kt]}')
        for b in blocks:
            P_=[W+9*0,W+9*1]
            for kt in range(2):
                tf=30 if kt==0 else 32
                if b==0: a(f'v_mov_b32 v{P_[kt]}, v{TH[kt]}')
                else: a(f'v_fmamk_f32 v{P_[kt]}, v{tf}, {f2h(16*b)}, v{TH[kt]}')
            for kt in range(2):
                p=P_[kt]; a(f'v_cos_f32 v{p+1}, v{p}\nv_sin_f32 v{p+5}, v{p}')
            for kt in range(2):
                p=P_[kt]; a(f'v_mul_f32 v{p+2}, v{p+1}, v{CD[kt]}\nv_mul_f32 v{p+6}, v{p+5}, v{CD[kt]}')
            for kt in range(2):
                p=P_[kt]; a(f'v_fmac_f32 v{p+2}, v{p+5}, v{NSD[kt]}\nv_fmac_f32 v{p+6}, v{p+1}, v{SD[kt]}')
            for kt in range(2):
                p=P_[kt]; a(f'v_fma_f32 v{p+3}, v{CD2[kt]}, v{p+2}, -v{p+1}\nv_fma_f32 v{p+7}, v{CD2[kt]}, v{p+6}, -v{p+5}')
            for kt in range(2):
                p=P_[kt]; a(f'v_fma_f32 v{p+4}, v{CD2[kt]}, v{p+3}, -v{p+2}\nv_fma_f32 v{p+8}, v{CD2[kt]}, v{p+7}, -v{p+6}')
            kk=b>>1; q=b&1
            for kt in range(2):
                p=P_[kt]; d=BC+16*kt+4*kk+2*q
                a(f'v_cvt_pk_bf16_f32 v{d}, v{p+1}, v{p+2}\nv_cvt_pk_bf16_f32 v{d+1}, v{p+3}, v{p+4}')
                if b==0:
                    a(f'v_cndmask_b32 v{p+5}, v{p+5}, v33, s[42:43]')
                d2=d+8
                a(f'v_cvt_pk_bf16_f32 v{d2+1}, -v{p+7}, -v{p+8}')
            for kt in range(2):
                p=P_[kt]; d2=BC+16*kt+4*kk+2*q+8
                a(f'v_cvt_pk_bf16_f32 v{d2}, -v{p+5}, -v{p+6}')
    pre=OPT.get('pre',0)
    groups=[(kt,kk) for kt in range(2) for kk in range(4)]
    mid=OPT.get('mid',4)
    if OPT.get('rc'):
        groups=[]
        nb=OPT.get('nb',4)
        rconsts(range(nb),True)
        srd(a,8,64,65,'0x400000')
    for kt,kk in groups[:pre]: consts(kt,[kk])
    if OPT.get('sen'):
        ts(a,5)
        a("""s_cmp_lg_u32 s23, 0
        s_cbranch_scc1 L_ready
        s_mov_b32 s47, 0x40000
        s_waitcnt vmcnt(2)
        s_branch L_pchk""")
        a.lab('L_poll')
        a("""s_sub_u32 s47, s47, 1
        s_cbranch_scc1 L_ready
        buffer_load_dword v210, v208, s[12:15], 0 offen sc1
        s_waitcnt vmcnt(0)""")
        a.lab('L_pchk')
        a("""v_cmp_ne_u32 vcc, v210, v209
        s_cbranch_vccnz L_poll""")
    else:
        a.lab('L_drain')
        a('s_waitcnt vmcnt(0)')
        ts(a,5)
        a('s_barrier')
        if OPT.get('ws'):
            a("""s_cmp_lg_u32 s23, 0
            s_cbranch_scc1 L_nosig
            s_mov_b32 s47, 0x40000""")
            a.lab('L_ipoll')
            a("""v_cmp_eq_u32 vcc, 0, v19
            s_cbranch_vccz L_iok
            s_sub_u32 s47, s47, 1
            s_cbranch_scc1 L_iok
            v_mov_b32 v16, 0
            buffer_load_dword v19, v16, s[16:19], 0 offen sc1
            s_waitcnt vmcnt(0)
            s_branch L_ipoll""")
            a.lab('L_iok')
            R=OPT.get('rep',1)
            a(f"""s_mov_b64 exec, {(1<<R)-1 if R<32 else -1}
            {'s_mov_b32 exec_hi, 0' if R==32 else 's_nop 0'}
            v_mul_u32_u24 v16, {NS*ST}, v2
            v_mov_b32 v17, 1
            v_add_u32 v16, s45, v16
            buffer_atomic_add v17, v16, s[12:15], 0 offen
            s_mov_b64 exec, -1""")
            if OPT.get('tsig'): ts(a,6)
        else: a("""s_cmp_lg_u32 s23, 0
        s_cbranch_scc1 L_nosig
        s_mov_b64 exec, 1
        v_mov_b32 v16, s45
        v_mov_b32 v17, 1
        %s
        s_mov_b64 exec, -1"""%('buffer_store_byte v17, v16, s[16:19], 0 offen sc1' if OPT.get('byte') else 'buffer_atomic_add v17, v16, s[16:19], 0 offen'+(' sc0' if OPT.get('atret') else '')))
        if OPT.get('atret'):
            a('s_waitcnt vmcnt(0)'); ts(a,6)
        a.lab('L_nosig')
        a("""s_cmp_ge_u32 s2, 256
        s_cbranch_scc1 L_done""")
        if OPT.get('rc'):
            PD=OPT.get('pd',1)
            PR=[20,21,22]
            rest=list(range(nb,4))
            TWO=(OPT.get('ws')==128)
            if TWO: a(f's_mov_b32 s50, {64*OPT.get("st",256)}')
            for k in range(PD):
                a(f"s_cmp_lg_u32 s23, 0\ns_cbranch_scc1 L_np{k}\nbuffer_load_dword v{PR[k]}, v35, s[POLLSRD], 0 offen sc1")
                if TWO: a('buffer_load_dword v23, v35, s[POLLSRD], s50 offen sc1')
                a.lab(f'L_np{k}')
                if k<PD-1 and rest: rconsts([rest.pop(0)],False)
            if rest: rconsts(rest,False)
            if not OPT.get('tsig'): ts(a,6)
            a("s_cmp_eq_u32 s23, 0\ns_cbranch_scc1 L_pollw")
            if OPT.get('dry'):
                a("s_cmp_lg_u32 s23, %d\ns_cbranch_scc1 L_ready\ns_mov_b64 vcc, -1\ns_branch L_dry"%OPT['dry'])
                a.lab('L_dryret')
            a("s_branch L_ready")
            a.lab('L_pollw')
            a("s_mov_b32 s47, %s"%('0' if OPT.get('nopoll') else '0x40000'))
            a.lab('L_poll')
            if TWO:
                a("""s_waitcnt vmcnt(0)
                v_cmp_ne_u32 vcc, v20, v15
                v_cmp_ne_u32 s[48:49], 1, v23
                s_or_b64 vcc, vcc, s[48:49]
                s_cbranch_vccz L_ready
                buffer_load_dword v20, v35, s[POLLSRD], 0 offen sc1
                buffer_load_dword v23, v35, s[POLLSRD], s50 offen sc1""")
            else:
              for k in range(PD):
                a(f"""s_waitcnt vmcnt({PD-1})
                v_cmp_ne_u32 vcc, v{PR[k]}, v15
                s_cbranch_vccz L_ready
                buffer_load_dword v{PR[k]}, v35, s[POLLSRD], 0 offen sc1""")
            a("""s_sub_u32 s47, s47, 1
            s_cbranch_scc0 L_poll""")
        else:
            a("""s_cmp_lg_u32 s23, 0
            s_cbranch_scc1 L_nopoll0
            buffer_load_dword v18, v35, s[POLLSRD], 0 offen sc1""")
            a.lab('L_nopoll0')
            for kt,kk in groups[pre:mid]: consts(kt,[kk])
            if not OPT.get('atret') and not OPT.get('tsig'): ts(a,6)
            a("""s_cmp_lg_u32 s23, 0
            s_cbranch_scc1 L_ready
            s_mov_b32 s47, %s"""%('0' if OPT.get('nopoll') else '0x40000'))
            a.lab('L_poll')
            a("""s_waitcnt vmcnt(0)
            v_cmp_ne_u32 vcc, v18, v15
            s_cbranch_vccz L_ready
            s_sub_u32 s47, s47, 1
            s_cbranch_scc1 L_ready
            buffer_load_dword v18, v35, s[POLLSRD], 0 offen sc1
            s_branch L_poll""")
    a.lab('L_ready')
    a('s_barrier')
    if OPT.get('prio'): a('s_setprio %d'%OPT['prio'])
    if OPT.get('dry') and not OPT.get('sen'): a('s_mov_b64 vcc, 0')
    ts(a,7)
    if OPT.get('sen'):
        NA=208
        a('s_mov_b32 s47, 0x20000\ns_add_u32 s36, s30, 0x20000\ns_mov_b32 s44, 0xffff\nv_cmp_eq_u32 s[48:49], 0, v1')
        a.lab('L_tld')
        a(f"""buffer_load_dwordx4 {vr(NA,4)}, v8, s[12:15], s29 offen sc1
        buffer_load_dwordx4 {vr(MI,4)}, v11, s[12:15], s31 offen sc1
        buffer_load_dwordx4 {vr(NA+4,4)}, v8, s[12:15], s34 offen sc1
        buffer_load_dwordx4 {vr(MI+4,4)}, v9, s[12:15], s35 offen sc1
        s_cmp_lg_u32 s24, 0
        s_cbranch_scc1 L_p2_nz
        buffer_load_ushort v24, v12, s[12:15], s30 offen sc1
        buffer_load_ushort v25, v0, s[12:15], s36 offen sc1""")
        a.lab('L_p2_nz')
        if OPT.get('dry'):
            a("s_cmp_lg_u32 s47, 0x20000\ns_cbranch_scc1 L_dryret\ns_cmp_lg_u32 s23, %d\ns_cbranch_scc1 L_dryret\ns_mov_b64 vcc, -1\ns_branch L_nob"%OPT['dry'])
            a.lab('L_dryret')
        a('s_waitcnt vmcnt(0)')
        ts(a,8)
        a('s_cmp_lg_u32 s24, 0\ns_cbranch_scc1 L_p2_nofix')
        a(f"""v_lshlrev_b32 v24, 16, v24
        v_lshlrev_b32 v25, 16, v25
        v_bfi_b32 v24, s44, v{MI+3}, v24
        v_bfi_b32 v25, s44, v{MI+7}, v25
        v_cndmask_b32 v{MI+3}, v{MI+3}, v24, s[48:49]
        v_cndmask_b32 v{MI+7}, v{MI+7}, v25, s[48:49]""")
        a.lab('L_p2_nofix')
        M=T0+8
        for k in range(4): a(f'v_pk_max_u16 v{M+k}, v{NA+k}, v{NA+4+k}')
        for k in range(4): a(f'v_pk_max_u16 v{M+4+k}, v{MI+k}, v{MI+4+k}')
        for k in range(4): a(f'v_pk_max_u16 v{M+k}, v{M+k}, v{M+4+k}')
        a(f"""v_pk_max_u16 v{M}, v{M}, v{M+1}
        v_pk_max_u16 v{M+2}, v{M+2}, v{M+3}
        s_sub_u32 s47, s47, 1
        v_pk_max_u16 v{M}, v{M}, v{M+2}
        s_cbranch_scc1 L_tok
        v_lshrrev_b32 v{M+1}, 16, v{M}
        v_max_u16 v{M}, v{M}, v{M+1}
        v_cmp_eq_u16 vcc, -1, v{M}
        s_cbranch_vccnz L_tld""")
        a.lab('L_tok')
        if OPT.get('dry'): a('s_mov_b64 vcc, 0')
        a(f'ds_write_b128 v13, {vr(NA,4)}\nds_write_b128 v13, {vr(NA+4,4)} offset:1024')
    else:
        a(f"""buffer_load_dwordx4 {vr(NA,4)}, v8, s[12:15], s29 offen sc1
        buffer_load_dwordx4 {vr(MI,4)}, v11, s[12:15], s31 offen sc1
        buffer_load_dwordx4 {vr(NA+4,4)}, v8, s[12:15], s34 offen sc1
        buffer_load_dwordx4 {vr(MI+4,4)}, v9, s[12:15], s35 offen sc1
        s_cmp_lg_u32 s24, 0
        s_cbranch_scc1 L_p2_nz
        s_add_u32 s36, s30, 0x20000
        buffer_load_ushort v24, v12, s[12:15], s30 offen sc1
        buffer_load_ushort v25, v0, s[12:15], s36 offen sc1""")
        a.lab('L_p2_nz')
        if not OPT.get('rc'): srd(a,8,64,65,'0x400000')
        for kt,kk in groups[mid:]: consts(kt,[kk])
        a('s_waitcnt vmcnt(0)')
        ts(a,8)
        a.lab('L_dry')
        a(f'ds_write_b128 v13, {vr(NA,4)}\nds_write_b128 v13, {vr(NA+4,4)} offset:1024')
        a('s_cmp_lg_u32 s24, 0\ns_cbranch_scc1 L_p2_nofix')
        a(f"""s_mov_b32 s44, 0xffff
        v_cmp_eq_u32 s[48:49], 0, v1
        v_lshlrev_b32 v24, 16, v24
        v_lshlrev_b32 v25, 16, v25
        v_bfi_b32 v24, s44, v{MI+3}, v24
        v_bfi_b32 v25, s44, v{MI+7}, v25
        v_cndmask_b32 v{MI+3}, v{MI+3}, v24, s[48:49]
        v_cndmask_b32 v{MI+7}, v{MI+7}, v25, s[48:49]""")
        a.lab('L_p2_nofix')
    for i in range(2):
        for k in range(4):
            a(f'v_alignbit_b32 v{T0+4*i+k}, v{MI+4*i+3-k}, v{MI+4*i+3-k}, 16')
    a(f'ds_write_b128 v13, {vr(T0,4)} offset:8192\nds_write_b128 v13, {vr(T0+4,4)} offset:9216')
    a('s_waitcnt lgkmcnt(0)')
    if OPT.get('dry'): a('s_cbranch_vccnz L_nob')
    a('s_barrier')
    a.lab('L_nob')
    ts(a,9)
    reads=[(kk,ct,q) for kk in range(4) for ct in range(4) for q in range(2)]
    issued=0
    def issue(upto):
        nonlocal issued
        while issued<min(upto,len(reads)):
            kk,ct,q=reads[issued]
            a(f'ds_read_b64_tr_b16 {vr(AR+16*kk+4*ct+2*q,2)}, v{26+ct} offset:{4096*kk+2048*q}')
            issued+=1
    issue(14)
    for kk in range(4):
        for ct in range(4):
            need=2*(4*kk+ct)+2
            a(f's_waitcnt lgkmcnt({issued-need})')
            for kt in range(2):
                acc=ACC+16*kt+4*ct
                a(mfma(acc,AR+16*kk+4*ct,BC+16*kt+4*kk,None if kk==0 else acc))
            issue(need+14)
    a('s_nop 1')
    for kt in range(2):
        for p in range(2):
            t0=ACC+16*kt+8*p; t1=t0+4
            o=[164,168,172,176][2*kt+p]
            a(f"""v_cvt_pk_bf16_f32 v{o}, v{t0}, v{t0+1}
            v_cvt_pk_bf16_f32 v{o+1}, v{t0+2}, v{t0+3}
            v_cvt_pk_bf16_f32 v{o+2}, v{t1}, v{t1+1}
            v_cvt_pk_bf16_f32 v{o+3}, v{t1+2}, v{t1+3}
            s_nop 1
            v_permlane16_swap_b32 v{o}, v{o+2}
            v_permlane16_swap_b32 v{o+1}, v{o+3}""")
            a(f's_add_u32 s41, s38, {kt*524288}')
            if OPT.get('dry'): a(f's_cbranch_vccnz L_ns{kt}{p}' if (kt,p)!=(1,1) else 's_cbranch_vccnz L_dryret')
            a(f'buffer_store_dwordx4 {vr(o,4)}, v14, s[8:11], s41 offen offset:{64*p}')
            if OPT.get('dry') and (kt,p)!=(1,1): a.lab(f'L_ns{kt}{p}')
    ts(a,10)
    a.lab('L_done')
    tsdump(a)
    a('s_endpgm')
    a.lab('L_idle')
    if OPT.get('ws'):
        a(f"""s_cmp_lg_u32 s2, 258
        s_cbranch_scc1 L_end""")
        ts(a,0)
        a(f"""s_nop 0
        s_load_dwordx4 s[64:67], s[0:1], 88
        v_cmp_gt_u32 vcc, {min(2*NS*OPT.get('rep',1),64)}, v0
        s_and_b64 exec, exec, vcc
        s_cbranch_execz L_end
        v_mul_u32_u24 v1, {ST}, v0
        v_mov_b32 v2, 0
        v_add_u32 v1, 0x210000, v1
        s_waitcnt lgkmcnt(0)""")
        if OPT.get('off'): a(f's_add_u32 s66, s66, {OPT["off"]}\ns_addc_u32 s67, s67, 0')
        srd(a,12,66,67,'0x240000')
        srd(a,16,64,65,'256')
        for q in range(1,2*NS*OPT.get('rep',1)//64): a(f's_mov_b32 s20, {64*ST*q}\nbuffer_store_dword v2, v1, s[12:15], s20 offen sc1')
        a("""buffer_store_dword v2, v1, s[12:15], 0 offen sc1
        v_mov_b32 v3, 1
        s_mov_b64 exec, 1
        s_waitcnt vmcnt(0)""")
        ts(a,1)
        a('buffer_store_dword v3, v2, s[16:19], 0 offen sc1')
        if INSTR:
            a('s_mov_b32 s68, s66\ns_mov_b32 s69, s67\ns_mov_b32 s23, 0\ns_branch L_done')
    a.lab('L_end')
    a('s_endpgm')
    t=a.txt().replace('s[POLLSRD]','s[12:15]' if OPT.get('ws') else 's[16:19]')
    return head(name)+t+desc(name,216,96)

def build(path):
    ref=open('cdna_kernels/%s.s.ref'%NAME).read()
    hdr=ref.split('; Override')[0]
    s=hdr
    s+="; 2D DFT (real part) of x via point-symmetric (Hartley) folding; DFT constants are generated in-kernel.\n"
    s+="; One launch: stage 1 publishes T (write-through) and signals counters in d_debug; stage 2 waits on them.\n"
    s+="; @launch grid=(272,1,1) block=(256,1,1) lds=49152\n"
    s+='.amdgcn_target "amdgcn-amd-amdhsa--gfx950"\n'
    s+=fused(NAME+'_kernel')
    open(path,'w').write(s)
if __name__=='__main__':
    for x in sys.argv[2:]:
        if x=='instr': INSTR=True
        else:
            k,v=x.split('='); OPT[k]=int(v)
    build(sys.argv[1])
```
